```python
import torch

def _softmax(x, axis=-1):
    return torch.softmax(x, dim=axis)
def _gelu(x):
    return torch.nn.functional.gelu(x, approximate="tanh")
def _silu(x):
    return torch.nn.functional.silu(x)
def _sigmoid(x):
    return torch.sigmoid(x)
def _layernorm(x, axis=-1, eps=1e-5):
    m = x.mean(dim=axis, keepdim=True)
    v = x.var(dim=axis, keepdim=True, unbiased=False)
    return (x - m) / torch.sqrt(v + eps)
def _scatter_add(tgt, idx, src, axis=0):
    return tgt.clone().index_add_(axis, idx, src)
def _segment_sum(src, seg, n):
    out = torch.zeros((n,) + src.shape[1:], dtype=src.dtype)
    return out.index_add_(0, seg, src)
def _pad(x, pw):
    flat = tuple(v for pair in reversed(pw) for v in pair)
    return torch.nn.functional.pad(x, flat)

kernel_name = 'interleave_layers__sliding_block__dense_activation_squared_relu__prompt'

def setup_inputs():

    _w = (lambda a: (lambda t: t.to(torch.bfloat16) if t.is_floating_point() else t)(torch.as_tensor(a)))
    def _A_setup():
        B, S, D = 1, 2048, 640
        return {
            "x": _w((lambda *s: torch.randn(*s, dtype=torch.bfloat16) * 0.05)(B, S, D)),
            "wqkv": _w((lambda *s: torch.randn(*s, dtype=torch.bfloat16) * 0.05)(D, 3 * D)),
            "wo": _w((lambda *s: torch.randn(*s, dtype=torch.bfloat16) * 0.05)(D, D)),
        }
    _A_in = _A_setup()

    def _B_setup():
        B, S, D, F = 1, 2048, 640, 1728
        return {
            "x": _w((lambda *s: torch.randn(*s, dtype=torch.bfloat16) * 0.05)(B, S, D)),
            "w1": _w((lambda *s: torch.randn(*s, dtype=torch.bfloat16) * 0.05)(D, F)),
            "b1": _w((lambda *s: torch.randn(*s, dtype=torch.bfloat16) * 0.2)(F)),
            "w2": _w((lambda *s: torch.randn(*s, dtype=torch.bfloat16) * 0.05)(F, D)),
            "b2": _w((lambda *s: torch.randn(*s, dtype=torch.bfloat16) * 0.8)(D)),
        }
    _B_in = _B_setup()

    return {
        "A_x": _A_in["x"],
        "A_wqkv": _A_in["wqkv"],
        "A_wo": _A_in["wo"],
        "B_x": _B_in["x"],
        "B_w1": _B_in["w1"],
        "B_b1": _B_in["b1"],
        "B_w2": _B_in["w2"],
        "B_b2": _B_in["b2"],
    }

def reference(A_x, A_wqkv, A_wo, B_x, B_w1, B_b1, B_w2, B_b2):
    def _A_ref(x, wqkv, wo):
        B, S, D = x.shape
        H = 32; Dh = D // H; W = 256
        qkv = (lambda x, *d: x.permute(*d))((x @ wqkv).reshape(B, S, 3, H, Dh), 2, 0, 3, 1, 4)
        q, k, v = qkv[0], qkv[1], qkv[2]
        scores = torch.einsum("bhqd,bhkd->bhqk", q, k) * (Dh ** -0.5)
        idx = torch.arange(S)
        mask = (idx[:, None] - idx[None, :] >= 0) & (idx[:, None] - idx[None, :] < W)
        scores = torch.where(mask[None, None], scores, -1e9)
        p = _softmax(scores, axis=-1)
        o = torch.einsum("bhqk,bhkd->bhqd", p, v)
        return (lambda x, *d: x.permute(*d))(o, 0, 2, 1, 3).reshape(B, S, D) @ wo

    def _B_ref(x, w1, b1, w2, b2):
        h = torch.einsum("bsd,df->bsf", x, w1) + b1
        zero = torch.zeros_like(h)
        r = torch.where(h > zero, h, zero)
        h = r * r
        out = torch.einsum("bsf,fd->bsd", h, w2) + b2
        return out

    x = A_x
    x = x + _A_ref(_layernorm(x, axis=-1), A_wqkv, A_wo)
    x = x + _B_ref(_layernorm(x, axis=-1), B_w1, B_b1, B_w2, B_b2)
    x = x + _A_ref(_layernorm(x, axis=-1), A_wqkv, A_wo)
    x = x + _B_ref(_layernorm(x, axis=-1), B_w1, B_b1, B_w2, B_b2)
    return x
```

```python
import re
TRANS=("v_exp_f32","v_rcp_f32","v_rsq_f32","v_log_f32","v_sqrt_f32")
def regs_of(tok):
    tok=tok.strip()
    m=re.fullmatch(r"(-?)\|?([vas])\[(\d+):(\d+)\]\|?",tok)
    if m: return [(m.group(2),i) for i in range(int(m.group(3)),int(m.group(4))+1)]
    m=re.fullmatch(r"(-?)\|?([vas])(\d+)\|?",tok)
    if m: return [(m.group(2),int(m.group(3)))]
    if tok=="vcc": return [("s",106),("s",107)]
    if tok=="m0": return [("m",0)]
    if tok=="exec": return [("e",0)]
    return []
def parse(line):
    s=line.split(";")[0].strip()
    if not s or s.endswith(":") or s.startswith("."): return None
    p=s.split(None,1); op=p[0]; rest=p[1] if len(p)>1 else ""
    toks=[t.strip() for t in rest.split(",")]
    ops=[]
    for t in toks:
        ops.append(t.split()[0] if t.split() else "")
    R=[regs_of(t) for t in ops]
    d=dict(op=op,kind="other",w=[],r=[],c=[],ab=[],mods=rest)
    if op.startswith("v_mfma"):
        d.update(kind="mfma",w=R[0],ab=R[1]+R[2],c=R[3],r=R[1]+R[2]+R[3])
    elif op.startswith("v_"):
        d["kind"]="valu"
        if op.startswith("v_permlane"): d.update(w=R[0]+R[1],r=R[0]+R[1])
        elif op.startswith("v_cmp"):
            d.update(w=R[0],r=sum(R[1:],[]))
        else:
            d.update(w=R[0],r=sum(R[1:],[]))
            if op.startswith("v_cndmask") and len(ops)==3: d["r"]=d["r"]+regs_of("vcc")
            if op.startswith("v_dot2") or False: pass
    elif op.startswith("buffer_load"):
        d["kind"]="vmem"
        if " lds" in rest: d.update(r=sum(R,[])+[("m",0)],lds=True)
        else: d.update(w=R[0],r=sum(R[1:],[]))
    elif op.startswith("buffer_store"):
        d.update(kind="vmem",r=sum(R,[]),sdata=R[0] if ("x4" in op or "x3" in op) else [])
    elif op.startswith("ds_read"): d.update(kind="ds",w=R[0],r=sum(R[1:],[]))
    elif op.startswith("ds_"): d.update(kind="ds",r=sum(R,[]))
    elif op=="s_nop": d.update(kind="nop",n=int(ops[0])+1)
    elif op.startswith("s_"):
        d["kind"]="salu"
        if op.startswith(("s_cmp","s_cbranch","s_branch","s_waitcnt","s_barrier","s_endpgm","s_setprio","s_bitcmp")): d.update(r=sum(R,[]))
        else: d.update(w=R[0],r=sum(R[1:],[]))
    return d
def fix_hazards(lines):
    out=[]; pos=0
    last={}
    def need(key,regs,ws):
        n=0
        for r in regs:
            p=last.get((key,r))
            if p is not None: n=max(n, ws-(pos-p-1))
        return n
    for ln in lines:
        d=parse(ln)
        if d is None:
            out.append(ln); continue
        k=d["kind"]; n=0
        vr=[r for r in d["r"] if r[0] in "va"]; vw=[r for r in d["w"] if r[0] in "va"]
        sr=[r for r in d["r"] if r[0]=="s"]
        if k=="mfma":
            n=max(n,need("valu",vr,2),need("mfma",d["ab"],8))
        elif k=="valu":
            n=max(n,need("mfma",vr+vw,8),need("mfc",vw,3),need("sdata",vw,2),need("vsg",sr,2),need("dot",vr+vw,3))
            if d["op"] not in TRANS: n=max(n,need("trans",vr,1))
            if d["op"].startswith("v_permlane") or "dpp" in d["mods"] or "row_" in d["mods"]: n=max(n,need("valu",vr,2))
            if d["op"].startswith(("v_readfirstlane","v_readlane")): n=max(n,need("valu",vr,1))
        elif k in("vmem","ds"):
            n=max(n,need("mfma",vr+vw,8),need("vsg",sr,5),need("sdata",vw,1))
            if d.get("lds"): n=max(n,need("m0",[("m",0)],1))
        elif k=="salu":
            n=max(n,need("vsg",sr,1))
        if n>0:
            out.append(f"s_nop {n-1}"); pos+=n
        out.append(ln)
        if k=="nop": pos+=d["n"]; continue
        if k=="mfma":
            for r in d["w"]: last[("mfma",r)]=pos
            for r in d["c"]: last[("mfc",r)]=pos
        elif k=="valu":
            for r in d["w"]:
                if r[0] in "va":
                    last[("valu",r)]=pos
                    if d["op"] in TRANS: last[("trans",r)]=pos
                    if d["op"].startswith("v_dot2"): last[("dot",r)]=pos
                else: last[("vsg",r)]=pos
        elif k=="vmem":
            for r in d.get("sdata",[]): last[("sdata",r)]=pos
        elif k=="salu":
            if ("m",0) in d["w"]: last[("m0",("m",0))]=pos
        pos+=1
    return out

class Cnt:
    def __init__(s,mx): s.p={}; s.mx=mx
    def issue(s,tag=None):
        for k in s.p: s.p[k]+=1
        if tag is not None: s.p[tag]=0
    def need(s,tags):
        n=None
        for t in tags:
            if t in s.p: n=s.p[t] if n is None else min(n,s.p[t])
        if n is None: return None
        drop=[k for k,v in s.p.items() if v>=n]
        for k in drop: del s.p[k]
        return n
    def clear(s): s.p={}
    def copy(s):
        c=Cnt(s.mx); c.p=dict(s.p); return c
    def merge(s,o):
        for k,v in o.p.items(): s.p[k]=min(v,s.p.get(k,v))
class E:
    def __init__(s): s.L=[]; s.vm=Cnt(63); s.lg=Cnt(15); s.uid=0
    def __call__(s,txt):
        for l in txt.strip("\n").split("\n"):
            l=l.strip()
            if l: s.L.append(l)
    def vmem(s,txt,tag=None): s.L.append(txt); s.vm.issue(tag)
    def ds(s,txt,tag=None): s.L.append(txt); s.lg.issue(tag)
    def wvm(s,*tags):
        n=s.vm.need(tags)
        if n is not None: s.L.append(f"s_waitcnt vmcnt({min(n,63)})")
    def wlg(s,*tags):
        n=s.lg.need(tags)
        if n is not None and n<=15: s.L.append(f"s_waitcnt lgkmcnt({n})")
        elif n is not None: s.L.append(f"s_waitcnt lgkmcnt(15)")
    def wvm0(s): s.L.append("s_waitcnt vmcnt(0)"); s.vm.clear()
    def wlg0(s): s.L.append("s_waitcnt lgkmcnt(0)"); s.lg.clear()
    def lab(s,p="L"): s.uid+=1; return f"{p}{s.uid}"
def V(i,n=1): return f"v{i}" if n==1 else f"v[{i}:{i+n-1}]"
def A(i,n=1): return f"a{i}" if n==1 else f"a[{i}:{i+n-1}]"
```

```python
from emit import *
from lay import *
import copy
MF="v_mfma_f32_16x16x32_bf16"
WS="s[4:7]"; OUT="s[8:11]"; B1="s[12:15]"; B2="s[16:19]"
sC,sJ,sW=20,21,22
sFL=23
sT=[24,25,26,27,28,29,30,31]
R0=4
LDS_ST=81920; LDS_QX=82944; LDS_RED=0
class WQ:
    def __init__(s,e): s.e=e; s.free=list(range(64)); s.q=[]; s.slot={}; s.cur={}; s.fixed={}
    def copy(s,e):
        c=WQ(e); c.free=list(s.free); c.q=list(s.q); c.slot=dict(s.slot); c.cur=dict(s.cur); c.fixed=dict(s.fixed); return c
    def push(s,items): s.q+=items
    def cursor(s,sg): s.cur[sg]=0
    def issue(s,n=1,mod=""):
        k=0
        while k<n and s.q and s.free:
            it=s.q[0]; tag,sg,idx=it[:3]; m2=it[3] if len(it)>3 else mod
            if tag in s.fixed:
                if s.fixed[tag] not in s.free: break
                sl=s.fixed[tag]; s.free.remove(sl)
            else:
                res=set(s.fixed[t[0]] for t in s.q if t[0] in s.fixed)
                cand=[x for x in s.free if x not in res] or s.free
                sl=cand[0]; s.free.remove(sl)
            s.q.pop(0); s.slot[tag]=sl
            while s.cur[sg]<idx//4: s.e(f"s_add_u32 s{sg}, s{sg}, 4096"); s.cur[sg]+=1
            assert s.cur[sg]==idx//4,(tag,sg,idx,s.cur[sg])
            o=(idx%4)*1024
            s.e.vmem(f"buffer_load_dwordx4 {A(4*sl,4)}, v1, {WS}, s{sg} offen"+(f" offset:{o}" if o else "")+m2,tag); k+=1
        return k
    def ensure(s,tag):
        while tag not in s.slot:
            assert s.q and s.free,("cannot ensure",tag,len(s.q),len(s.free))
            assert s.issue(1)==1,("stuck",tag,s.q[0])
    def use(s,tag):
        s.ensure(tag); s.e.wvm(tag); return A(4*s.slot[tag],4)
    def rel(s,tag): s.free.append(s.slot.pop(tag))
    def take(s,tag): sl=s.free.pop(0); s.slot[tag]=sl; return sl
def interleave(e,mains,fill,per=1,lead=0):
    fill=list(fill); n=len(mains)
    for i,m in enumerate(mains):
        m()
        rem=n-i
        k=-(-len(fill)//rem) if rem>0 else len(fill)
        for _ in range(min(k,len(fill))): fill.pop(0)()
    for f in fill: f()
class G:
    def __init__(g,opts):
        g.o=opts; g.e=E(); g.w=WQ(g.e); g.nst=0; g.maps={}
    def stamp(g,i):
        if not g.o.get("prof"): return
        e=g.e
        e("s_memtime s[98:99]"); e.wlg0()
        e(f"v_mov_b32 v255, s98\ns_lshl_b32 s98, s2, 2\ns_add_u32 s98, s98, s{sW}\ns_lshl_b32 s98, s98, 7\ns_add_u32 s98, s98, {(60<<20)+4*i}")
        e("s_mov_b64 exec, 1"); e.vmem(f"buffer_store_dword v255, off, s[100:103], s98".replace("s[100:103]","s[92:95]")); e("s_mov_b64 exec, -1")
    def publish(g,seq,pf=0):
        e=g.e; e.vm.p["__st"]=0
        if pf: g.w.issue(pf)
        e.wvm("__st")
        e(f"v_mov_b32 v3, {seq}\ns_mov_b64 exec, 1")
        e.vmem(f"buffer_store_dword v3, off, {WS}, s{sFL} sc1"); e("s_mov_b64 exec, -1")
    def poll(g,seq,vaddr):
        e=g.e; l=e.lab("PL"); d=e.lab("PD")
        e(f"s_mov_b32 s24, {g.o.get('spin',30000)}\n{l}:")
        e(f"buffer_load_dword v3, v{vaddr}, {WS}, 0 offen sc1\ns_waitcnt vmcnt(0)\nv_cmp_gt_u32 vcc, {seq}, v3\ns_sub_u32 s24, s24, 1\ns_cbranch_scc1 {d}\ns_cbranch_vccnz {l}\n{d}:")
        e.vm.clear()
    def fork(g,paths):
        e=g.e; end=e.lab("FE"); vm0,lg0,w0=e.vm,e.lg,g.w; res=[]
        labs=[e.lab("FK") for _ in paths]
        for (c,_),l in zip(paths[:-1],labs): e(c+f"\ns_cbranch_scc1 {l}")
        e(f"s_branch {labs[-1]}")
        for (c,fn),l in zip(paths,labs):
            e.vm=vm0.copy(); e.lg=lg0.copy(); g.w=w0.copy(e)
            e(f"{l}:"); fn(); e(f"s_nop 7\ns_branch {end}"); res.append((e.vm,e.lg,g.w))
        e(f"{end}:")
        e.vm,e.lg,g.w=res[0]
        for vm,lg,w in res[1:]:
            e.vm.merge(vm); e.lg.merge(lg)
            assert w.slot==g.w.slot and w.q==g.w.q,(w.slot,g.w.slot,len(w.q),len(g.w.q))
            for k_ in list(g.w.cur):
                if w.cur.get(k_)!=g.w.cur[k_]: del g.w.cur[k_]
        g.w.free=sorted(g.w.free)
    def prologue(g,name):
        e=g.e
        e(f""".globl {name}
.p2align 8
.type {name},@function
{name}:
s_cmp_ge_u32 s2, 256
s_cbranch_scc1 M_END
s_load_dwordx2 s[24:25], s[0:1], 40
s_load_dwordx2 s[26:27], s[0:1], 56
s_load_dwordx2 s[28:29], s[0:1], 64
s_load_dwordx2 s[30:31], s[0:1], 80
v_lshrrev_b32 v1, 6, v0
v_and_b32 v0, 63, v0
s_nop 0
v_readfirstlane_b32 s{sW}, v1
v_lshlrev_b32 v1, 4, v0
v_lshlrev_b32 v2, 3, v0""")
        if g.o.get("xmap"):
            e(f"s_lshr_b32 s{sC}, s2, 3\ns_and_b32 s{sJ}, s2, 7")
        else:
            e(f"s_and_b32 s{sC}, s2, 7\ns_lshl_b32 s{sC}, s{sC}, 2\ns_lshr_b32 s{sJ}, s2, 6\ns_add_u32 s{sC}, s{sC}, s{sJ}\ns_lshr_b32 s{sJ}, s2, 3\ns_and_b32 s{sJ}, s{sJ}, 7")
        e("s_waitcnt lgkmcnt(0)")
        for d,p,sz in ((4,30,WS_USED),(8,28,2048*1280),(12,24,3456),(16,26,1280),(92,30,64<<20)):
            if d==92 and not g.o.get("prof"): continue
            e(f"s_mov_b32 s{d}, s{p}\ns_mov_b32 s{d+1}, s{p+1}\ns_mov_b32 s{d+2}, {sz}\ns_mov_b32 s{d+3}, 0x00020000")
        e(f"""s_lshl_b32 s24, s{sC}, 7
s_add_u32 s24, s24, {FLAGS}
s_lshl_b32 s25, s{sJ}, 4
s_lshl_b32 s26, s{sW}, 2
s_add_u32 s25, s25, s26
s_add_u32 s{sFL}, s24, s25
v_and_b32 v236, 31, v0
v_lshlrev_b32 v236, 2, v236
v_add_u32 v236, s24, v236
v_lshrrev_b32 v3, 2, v0
v_cmp_gt_u32 vcc, 20, v0
v_cndmask_b32 v3, 0, v3, vcc
v_sub_u32 v237, s{sC}, v3
v_cmp_gt_i32 vcc, 0, v237
v_mov_b32 v3, s{sC}
v_cndmask_b32 v237, v237, v3, vcc
v_lshlrev_b32 v237, 7, v237
v_and_b32 v3, 3, v0
v_lshlrev_b32 v3, 2, v3
v_add_u32 v237, v237, v3
s_lshl_b32 s25, s{sJ}, 4
s_add_u32 s25, s25, {FLAGS}
v_add_u32 v237, s25, v237
v_add_u32 v238, 61440, v1
v_add_u32 v239, 61440, v2
v_lshrrev_b32 v240, 4, v0
v_and_b32 v241, 15, v0
s_mul_i32 s60, s{sC}, 8
s_add_u32 s60, s60, s{sJ}
s_lshl_b32 s61, s{sC}, 2
s_add_u32 s62, s61, s{sW}""")
        e(f"""s_mul_i32 s24, s62, 20480
s_add_u32 s24, s24, {XF[0]}
s_lshl_b32 s25, s{sJ}, 11
s_add_u32 s25, s25, s24
s_lshr_b32 s26, s{sJ}, 1
s_lshl_b32 s26, s26, 10
s_and_b32 s27, s{sJ}, 1
s_lshl_b32 s27, s27, 9
s_add_u32 s26, s26, s27
s_add_u32 s26, s26, 16384
s_add_u32 s26, s26, s24""")
        e.vmem(f"buffer_load_dwordx4 v[24:27], v1, {WS}, s25 offen","r0")
        e.vmem(f"buffer_load_dwordx4 v[28:31], v1, {WS}, s25 offen offset:1024","r1")
        e.vmem(f"buffer_load_dwordx2 v[32:33], v2, {WS}, s26 offen","r2")
        e.wvm("r2")
        for i in range(10):
            e(f"v_lshlrev_b32 v{R0+2*i}, 16, v{24+i}\nv_and_b32 v{R0+2*i+1}, 0xffff0000, v{24+i}")
    def qkv_cursors(g):
        e=g.e
        e(f"""s_mul_i32 s24, s{sJ}, {15*20480}
s_add_u32 s24, s24, {W_QKV}
s_mul_i32 s25, s{sW}, 20480
s_add_u32 s40, s24, s25
s_add_u32 s41, s40, {4*20480}
s_add_u32 s42, s40, {8*20480}
s_add_u32 s43, s40, {12*20480}""")
        for s in (40,41,42,43): g.w.cursor(s)
    def push_kv(g,L):
        it=[]
        for p in range(20): it+=[((L,"K",p),40,p),((L,"V",p),41,p)]
        g.w.push(it)
    def stage_x(g,xb,stb):
        e=g.e
        e(f"s_mul_i32 s24, s62, 20480\ns_add_u32 s24, s24, {xb}\ns_mul_i32 s25, s{sW}, 20480\ns_mov_b32 m0, s25")
        l=e.lab("ST")
        e(f"s_cmp_lg_u32 s{sW}, 0\ns_cbranch_scc1 {l}")
        e(f"s_lshl_b32 s26, s{sC}, 12\ns_add_u32 s26, s26, {stb}\nv_and_b32 v24, 31, v0\nv_lshlrev_b32 v24, 4, v24\nv_lshrrev_b32 v25, 5, v0\nv_lshlrev_b32 v25, 9, v25\nv_add_u32 v24, v24, v25")
        for q in range(4): e(f"buffer_load_dwordx4 v[{28+4*q}:{31+4*q}], v24, {WS}, s26 offen offset:{1024*q} sc1")
        e(f"{l}:")
        for p in range(20):
            if p and p%4==0: e("s_add_u32 s24, s24, 4096")
            e(f"buffer_load_dwordx4 v1, {WS}, s24 offen offset:{(p%4)*1024} sc1 lds")
            if p%4==3 and p<19: e("s_add_u32 s25, s25, 4096\ns_mov_b32 m0, s25")
        e.vm.clear()
    def stats_finish(g):
        e=g.e; l=e.lab("SF")
        e(f"s_cmp_lg_u32 s{sW}, 0\ns_cbranch_scc1 {l}")
        for r in range(4): e(f"v_add_f32 v{28+r}, v{28+r}, v{32+r}\nv_add_f32 v{36+r}, v{36+r}, v{40+r}")
        for r in range(4): e(f"v_add_f32 v{28+r}, v{28+r}, v{36+r}")
        for r in range(4): e(f"v_mov_b32 v{32+r}, v{28+r}")
        for r in range(4): e(f"v_permlane32_swap_b32 v{28+r}, v{32+r}")
        for r in range(4): e(f"v_add_f32 v{28+r}, v{28+r}, v{32+r}")
        e("s_mov_b32 s26, 0xbacccccd\ns_mov_b32 s27, 0x3acccccd")
        e("""v_mul_f32 v32, s26, v28
v_mul_f32 v33, s26, v30
v_mul_f32 v34, s27, v29
v_mul_f32 v35, s27, v31
v_fma_f32 v34, -v32, v32, v34
v_fma_f32 v35, -v33, v33, v35
v_max_f32 v34, 0, v34
v_max_f32 v35, 0, v35
v_add_f32 v34, 0x3727c5ac, v34
v_add_f32 v35, 0x3727c5ac, v35
v_rsq_f32 v34, v34
v_rsq_f32 v35, v35
v_and_b32 v24, 31, v0
v_lshlrev_b32 v24, 3, v24""")
        e(f"v_add_u32 v24, {LDS_ST}, v24\nds_write_b64 v24, v[32:33]\nds_write_b64 v24, v[34:35] offset:256\n{l}:")
        e("s_waitcnt lgkmcnt(0)\ns_barrier"); e.lg.clear()
    def xread(g,p,m,dst):
        e=g.e
        if p<16:
            b,o=("v1",m*20480+p*1024) if m<3 else ("v238",p*1024)
            e.ds(f"ds_read_b128 {V(dst,4)}, {b} offset:{o}",("x",p,m))
        else:
            b,o=("v2",m*20480+p*1024) if m<3 else ("v239",p*1024)
            e.ds(f"ds_read_b64 {V(dst,2)}, {b} offset:{o}")
            e.ds(f"ds_read_b64 {V(dst+2,2)}, {b} offset:{o+512}",("x",p,m))
    def gemm_x(g,tiles,pf,fill=None):
        e=g.e; fill=list(fill or [])
        XB=lambda p,m: 24+16*(p&1)+4*m
        for m in range(4): g.xread(0,m,XB(0,m))
        nper=-(-len(fill)//20)
        for p in range(20):
            mains=[]
            for (acc,sw,tf) in tiles:
                for m in range(4):
                    def mm(acc=acc,sw=sw,tf=tf,m=m,p=p):
                        a=g.w.use(tf(p)); e.wlg(("x",p,m)); x=V(XB(p,m),4); d=V(acc+4*m,4)
                        e(f"{MF} {d}, {x}, {a}, {d}" if sw else f"{MF} {d}, {a}, {x}, {d}")
                        if m==3: g.w.rel(tf(p))
                    mains.append(mm)
            fl=[]
            if p<19:
                for m in range(4): fl.append(lambda m=m,p=p: g.xread(p+1,m,XB(p+1,m)))
            for _ in range(pf(p)): fl.append(lambda: g.w.issue(1))
            for _ in range(min(nper,len(fill))): fl.append(fill.pop(0))
            interleave(e,mains,fl)
        for f in fill: f()
    def load_stats(g,row):
        e=g.e
        e(f"v_lshlrev_b32 v3, 2, v241\nv_add_u32 v3, {LDS_ST}, v3")
        for m in range(4):
            e.ds(f"ds_read_b32 v{136+m}, v3 offset:{64*m}","s"); e.ds(f"ds_read_b32 v{140+m}, v3 offset:{256+64*m}","s")
        if row:
            e(f"v_lshlrev_b32 v3, 4, v240\nv_add_u32 v3, {LDS_ST}, v3")
            for m in range(4):
                e.ds(f"ds_read_b128 {V(144+4*m,4)}, v3 offset:{64*m}","s"); e.ds(f"ds_read_b128 {V(160+4*m,4)}, v3 offset:{256+64*m}","s")
        e.wlg0()
    def init_acc(g,acc,cs,sw):
        e=g.e
        for m in range(4):
            for r in range(4):
                e(f"v_mul_f32 v{acc+4*m+r}, v{144+4*m+r}, v{cs}" if sw else f"v_mul_f32 v{acc+4*m+r}, v{136+m}, v{cs+r}")
    def scale_cvt(g,acc,m,dst,sw,rs=None):
        e=g.e; a=acc+4*m; f=[]
        for r in range(4): f.append(lambda r=r: e(f"v_mul_f32 v{a+r}, v{(160+4*m+r) if sw else (rs or 140)+m}, v{a+r}"))
        f.append(lambda: e(f"v_cvt_pk_bf16_f32 v{dst}, v{a}, v{a+1}")); f.append(lambda: e(f"v_cvt_pk_bf16_f32 v{dst+1}, v{a+2}, v{a+3}"))
        return f
    def qkv(g,L):
        e=g.e; xb=XF[2*L]; stb=ST[2*L]
        aK,aV,aX,aQ,aQX=56,72,88,104,120
        cK,cQ,cX,cV=176,180,184,188
        def path(wv):
            def fn():
                W=g.w
                hasx=wv<2;
                e(f"s_mul_i32 s24, s{sJ}, 960\ns_lshl_b32 s25, s{sW}, 6\ns_add_u32 s24, s24, s25\ns_add_u32 s24, s24, {CS_QKV}\nv_lshlrev_b32 v3, 4, v240\nv_lshlrev_b32 v192, 2, v241")
                e.vmem(f"buffer_load_dwordx4 {V(cK,4)}, v3, {WS}, s24 offen","cs"); e.vmem(f"buffer_load_dwordx4 {V(cQ,4)}, v3, {WS}, s24 offen offset:512","cs")
                e.vmem(f"buffer_load_dword v{cV}, v192, {WS}, s24 offen offset:256","cs")
                if wv==0 or wv==2: e.vmem(f"buffer_load_dwordx4 {V(cX,4)}, v3, {WS}, s24 offen offset:768","cs")
                if wv==1: e.vmem(f"buffer_load_dword v{cX}, v192, {WS}, s24 offen offset:768","cs")
                rest=W.q; W.q=[]
                if hasx:
                    kv={t[0]:t for t in rest}; it=[]
                    for p in range(20):
                        for n in ("K","V"):
                            if (L,n,p) in kv: it.append(kv[(L,n,p)])
                        it.append(((L,"X",p),43,p))
                    W.push(it)
                else: W.push(rest)
                for p in range(20):
                    W.push([((L,"Q",p),42,p)])
                    if wv==2: W.push([((L,"X",p),43,p)])
                if not g.o.get("nowopf"): g.push_wo(L)
                W.issue(g.o.get("pfq",12))
                if L>0: g.poll(5*L,236)
                g.stamp(1+12*L)
                g.stage_x(xb,stb); e.wvm0(); g.stats_finish()
                g.stamp(2+12*L)
                g.load_stats(True)
                g.init_acc(aK,cK,False); g.init_acc(aV,cV,True)
                if hasx: g.init_acc(aX,cX,wv==1)
                tiles=[(aK,False,lambda p:(L,"K",p)),(aV,True,lambda p:(L,"V",p))]
                if hasx: tiles.append((aX,wv==1,lambda p:(L,"X",p)))
                g.gemm_x(tiles,lambda p:3 if hasx else 2)
                g.stamp(3+12*L)
                g.init_acc(aQ,cQ,False)
                if wv==2: g.init_acc(aQX,cX,False)
                e(f"s_lshl_b32 s24, s60, 14\ns_add_u32 s24, s24, {KBUF[L]}\ns_lshl_b32 s25, s{sW}, 12\ns_add_u32 s25, s25, s24\ns_mul_i32 s26, s60, 10240\ns_add_u32 s26, s26, {VBUF[L]}\ns_lshl_b32 s27, s{sW}, 11\ns_add_u32 s27, s27, s26\ns_add_u32 s26, s26, 8192")
                T=24
                for m in range(4):
                    for f in g.scale_cvt(aK,m,T+2*m,False): f()
                    e.vmem(f"buffer_store_dwordx2 {V(T+2*m,2)}, v1, {WS}, s25 offen offset:{1024*m} sc1")
                for m in range(4):
                    for f in g.scale_cvt(aV,m,T+8+2*m,True): f()
                    if m&1: e.vmem(f"buffer_store_dwordx4 {V(T+8+2*m-2,4)}, v1, {WS}, s27 offen offset:{1024*(m>>1)} sc1")
                if wv==0:
                    e("v_add_u32 v3, 8, v1")
                    for m in range(4):
                        for f in g.scale_cvt(aX,m,T+16+2*m,False): f()
                        for h in range(4):
                            e(f"s_add_u32 s28, s24, {4096*h}"); e.vmem(f"buffer_store_dwordx2 {V(T+16+2*m,2)}, v3, {WS}, s28 offen offset:{1024*m} sc1")
                if wv==1:
                    for m in range(4):
                        for f in g.scale_cvt(aX,m,T+16+2*m,True): f()
                        if m&1: e.vmem(f"buffer_store_dwordx4 {V(T+16+2*m-2,4)}, v1, {WS}, s26 offen offset:{1024*(m>>1)} sc1")
                g.publish(5*L+1,pf=0)
                g.stamp(4+12*L)
                tiles=[(aQ,False,lambda p:(L,"Q",p))]
                if wv==2: tiles.append((aQX,False,lambda p:(L,"X",p)))
                g.gemm_x(tiles,lambda p:2)
                e("s_mov_b32 s24, 0x3ea52b5c")
                for m in range(4): e(f"v_mul_f32 v{140+m}, s24, v{140+m}")
                for m in range(4):
                    for f in g.scale_cvt(aQ,m,200+4*m,False): f()
                if wv==2:
                    for m in range(4):
                        for f in g.scale_cvt(aQX,m,T+2*m,False): f()
                        e.ds(f"ds_write_b64 v239, {V(T+2*m,2)} offset:{LDS_QX-61440+512*m}")
                while W.q: assert W.issue(1)==1
                for t_,sl in W.slot.items(): g.maps.setdefault(t_,sl)
                e.wlg0(); e("s_barrier")
            return fn
        g.fork([(f"s_cmp_eq_u32 s{sW}, 0",path(0)),(f"s_cmp_eq_u32 s{sW}, 1",path(1)),(f"s_cmp_eq_u32 s{sW}, 2",path(2)),(None,path(3))])
        for m in range(4): e.ds(f"ds_read_b64 {V(202+4*m,2)}, v239 offset:{LDS_QX-61440+512*m}")
        e(f"v_cmp_eq_u32 vcc, s{sW}, v240"); e.wlg0()
        for m in range(4):
            for r in range(2): e(f"v_cndmask_b32 v{202+4*m+r}, 0, v{202+4*m+r}, vcc")
    def push_wo(g,L):
        e=g.e; W=g.w
        e(f"s_lshl_b32 s44, s{sJ}, 2\ns_add_u32 s44, s44, s{sW}\ns_mul_i32 s44, s44, 25600\ns_add_u32 s44, s44, {W_O}")
        W.cursor(44); it=[]
        for k in range(25):
            t=(L,"WO",k); it.append((t,44,k))
            if t in g.maps: W.fixed[t]=g.maps[t]
        W.push(it)
    def w1_cursor(g,sg,ps):
        e=g.e
        if ps==0:
            e(f"""s_mul_i32 s63, s{sJ}, 7
s_cmp_eq_u32 s{sJ}, 7
s_cselect_b32 s63, 48, s63
s_lshl_b32 s24, s{sW}, 1
s_add_u32 s63, s63, s24
s_min_u32 s63, s63, 53""")
        e(f"s_add_u32 s24, s63, {ps}\ns_mul_i32 s24, s24, 40960\ns_add_u32 s{sg}, s24, {W_1}"); g.w.cursor(sg)
    def attention(g,L):
        e=g.e; W=g.w
        NEG="0xf149f2ca"
        S0,P0,OM,OX,VX,MK,QF=24,92,128,132,136,176,200
        e(f"s_mov_b32 s25, {NEG}\nv_lshlrev_b32 v3, 2, v240\nv_mov_b32 v216, s25")
        for d in (4,3,2,1):
            e(f"s_cmp_lt_u32 s{sC}, {d}\ns_cselect_b32 s24, s25, 0")
            for r in range(4): e(f"v_mov_b32 v{MK+8+4*(4-d)+r}, s24")
        for r in range(4):
            e(f"v_add_u32 v217, {r}, v3\nv_cmp_le_u32 vcc, v217, v241\nv_cndmask_b32 v{MK+r}, v216, 0, vcc".replace("v216, 0, vcc","v216, v219, vcc") if False else
              f"v_add_u32 v217, {r}, v3\nv_cmp_gt_u32 vcc, v217, v241\nv_cndmask_b32 v{MK+r}, 0, v216, vcc\nv_cndmask_b32 v{MK+4+r}, v216, v{MK+8+r}, vcc")
        for i in range(40): e(f"v_mov_b32 v{VX+i}, 0x3f803f80")
        for k,d in enumerate((4,3,2,1,0)):
            e(f"""s_sub_u32 s24, s{sC}, {d}
s_cmp_lt_u32 s{sC}, {d}
s_cselect_b32 s24, s{sC}, s24
s_lshl_b32 s24, s24, 3
s_add_u32 s24, s24, s{sJ}
s_lshl_b32 s25, s24, 14
s_lshl_b32 s26, s{sW}, 12
s_add_u32 s25, s25, s26
s_add_u32 s{45+k}, s25, {KBUF[L]}
s_mul_i32 s25, s24, 10240
s_add_u32 s{50+k}, s25, {VBUF[L]}""")
        e(f"s_lshl_b32 s55, s{sW}, 11\nv_add_u32 v218, s55, v1\nv_add_u32 v219, 8192, v1\nv_lshrrev_b32 v3, 2, v241\nv_cmp_eq_u32 s[56:57], s{sW}, v3")
        e(f"s_and_b32 s24, s{sW}, 1\ns_cmp_eq_u32 s24, 1\ns_cselect_b64 s[58:59], -1, 0")
        g.poll(5*L+1,237)
        g.stamp(6+12*L)
        def ldK(u):
            sl=W.take((L,"k",u)); o=(u&3)*1024
            e.vmem(f"buffer_load_dwordx4 {A(4*sl,4)}, v1, {WS}, s{45+(u>>2)} offen offset:{o} sc1",(L,"k",u))
        def ldV(pi):
            sl=W.take((L,"v",pi)); o=(pi&1)*1024
            e.vmem(f"buffer_load_dwordx4 {A(4*sl,4)}, v218, {WS}, s{50+(pi>>1)} offen offset:{o} sc1",(L,"v",pi))
        def ldX(pi):
            o=(pi&1)*1024
            e.vmem(f"buffer_load_dwordx4 {V(VX+4*pi,4)}, v219, {WS}, s{50+(pi>>1)} offen offset:{o} sc1",(L,"x",pi))
        for u in range(17): ldK(u)
        for pi in range(9): ldV(pi)
        e("s_mov_b64 exec, s[56:57]")
        for pi in range(10): ldX(pi)
        e("s_mov_b64 exec, -1")
        for u in range(17,20): ldK(u)
        ldV(9)
        g.w1_cursor(64,0)
        W.push([((L,"W1",0,k),64,k) for k in range(40)])
        def cop(i,u):
            if u==i: return V(MK+4,4)
            if u==16+i: return V(MK,4)
            d=4-(u>>2)
            return V(MK+8+4*(4-d),4) if d>0 else "0"
        def qk(i,q):
            u=i+q; e.wvm((L,"k",u))
            e(f"{MF} {V(S0+4*q,4)}, {A(4*W.slot[(L,'k',u)],4)}, {V(QF+4*i,4)}, {cop(i,u)}")
        def pv(i):
            f=[]
            for k in range(9):
                pi=(i>>1)+k
                def a(k=k,pi=pi):
                    e.wvm((L,"v",pi)); e(f"{MF} {V(OM,4)}, {A(4*W.slot[(L,'v',pi)],4)}, {V(P0+4*k,4)}, {V(OM,4) if k else '0'}")
                def b(k=k,pi=pi):
                    e.wvm((L,"x",pi)); e(f"{MF} {V(OX,4)}, {V(VX+4*pi,4)}, {V(P0+4*k,4)}, {V(OX,4) if k else '0'}")
                f+=[a,b]
            return f
        def fin(i):
            e(f"""v_mov_b32 v220, v{OX}
v_mov_b32 v221, v{OX}
v_permlane16_swap_b32 v220, v221
v_cndmask_b32 v220, v221, v220, s[58:59]
v_rcp_f32 v220, v220
s_add_u32 s24, s61, {i}
s_mul_i32 s24, s24, 20480
s_add_u32 s24, s24, {OB[L]}
s_lshl_b32 s25, s{sJ}, 11
s_lshr_b32 s26, s{sW}, 1
s_lshl_b32 s26, s26, 10
s_and_b32 s27, s{sW}, 1
s_lshl_b32 s27, s27, 3
s_add_u32 s25, s25, s26
s_add_u32 s25, s25, s27
s_add_u32 s25, s25, s24
s_lshr_b32 s26, s{sJ}, 1
s_lshl_b32 s26, s26, 10
s_and_b32 s27, s{sJ}, 1
s_lshl_b32 s27, s27, 9
s_add_u32 s26, s26, s27
s_add_u32 s26, s26, 16384
s_add_u32 s26, s26, s24""")
            for r in range(8): e(f"v_mul_f32 v{OM+r}, v220, v{OM+r}")
            e(f"v_cvt_pk_bf16_f32 v222, v{OM}, v{OM+1}\nv_cvt_pk_bf16_f32 v223, v{OM+2}, v{OM+3}\nv_cvt_pk_bf16_f32 v224, v{OX}, v{OX+1}\nv_cvt_pk_bf16_f32 v225, v{OX+2}, v{OX+3}")
            e.vmem(f"buffer_store_dwordx2 v[222:223], v1, {WS}, s25 offen sc1")
            e(f"v_cmp_eq_u32 vcc, s{sW}, v240\ns_mov_b64 exec, vcc")
            e.vmem(f"buffer_store_dwordx2 v[224:225], v2, {WS}, s26 offen sc1"); e("s_mov_b64 exec, -1")
        for q in range(17): qk(0,q)
        npf=g.o.get("pfa",3)
        for i in range(4):
            va=[]
            vals=[S0+k for k in range(68)]
            va.append(lambda: e(f"v_max3_f32 v226, v{vals[0]}, v{vals[1]}, v{vals[2]}"))
            va.append(lambda: e(f"v_max3_f32 v228, v{vals[3]}, v{vals[4]}, v{vals[5]}"))
            k=6
            while k<68:
                va.append(lambda k=k: e(f"v_max3_f32 v226, v226, v{vals[k]}, v{vals[k+1]}")); k+=2
                if k<68: va.append(lambda k=k: e(f"v_max3_f32 v228, v228, v{vals[k]}, v{vals[k+1]}")); k+=2
            va.append(lambda: e("v_max_f32 v226, v226, v228\nv_mov_b32 v227, v226\nv_permlane32_swap_b32 v226, v227\nv_max_f32 v226, v226, v227\nv_mov_b32 v227, v226\nv_permlane16_swap_b32 v226, v227\nv_max_f32 v226, v226, v227\nv_mov_b32 v227, v226"))
            for k in range(34): va.append(lambda k=k: e(f"v_pk_add_f32 {V(S0+2*k,2)}, {V(S0+2*k,2)}, v[226:227] neg_lo:[0,1] neg_hi:[0,1]"))
            if i>0:
                m=pv(i-1)
                vi=0
                for mm in m:
                    mm()
                    for _ in range(3):
                        if vi<len(va): va[vi](); vi+=1
                for f in va[vi:]: f()
                fin(i-1)
            else:
                for f in va: f()
            if i%2==0: e(f"v_mov_b32 v{P0+34}, 0\nv_mov_b32 v{P0+35}, 0")
            else: e(f"v_mov_b32 v{P0}, 0\nv_mov_b32 v{P0+1}, 0")
            pend=None
            for q in range(17):
                s=S0+4*q; pp=P0+2*q+(2 if i%2 else 0)
                for r in range(4): e(f"v_exp_f32 v{s+r}, v{s+r}")
                if pend is not None: pend()
                e(f"v_cvt_pk_bf16_f32 v{pp}, v{s}, v{s+1}\nv_cvt_pk_bf16_f32 v{pp+1}, v{s+2}, v{s+3}")
                pend=(lambda q=q: qk(i+1,q)) if i<3 else None
                if q%4==1: W.issue(1)
            if pend is not None: pend()
            W.issue(npf)
        for f in pv(3): f()
        for u in range(20): W.rel((L,"k",u))
        fin(3)
        for pi in range(10): W.rel((L,"v",pi))
        g.publish(5*L+2,pf=g.o.get("pfo",20))
    def reduce_epi(g,L,k,final):
        e=g.e
        for mm in range(3):
            e(f"s_add_u32 s24, s{sW}, {1+mm}\ns_and_b32 s24, s24, 3\ns_mul_i32 s24, s24, 15360\nv_add_u32 v3, s24, v1")
            for nt in range(5): e.ds(f"ds_write_b128 v3, {V(24+20*mm+4*nt,4)} offset:{mm*5120+nt*1024}")
        e(f"s_mul_i32 s24, s{sW}, 15360\nv_add_u32 v3, s24, v1")
        e.wlg0(); e("s_barrier")
        for mm in range(3):
            for nt in range(5): e.ds(f"ds_read_b128 {V(24+20*mm+4*nt,4)}, v3 offset:{mm*5120+nt*1024}",("r",mm,nt))
        for mm in range(3):
            for nt in range(5):
                e.wlg(("r",mm,nt))
                for h in range(2): e(f"v_pk_add_f32 {V(R0+4*nt+2*h,2)}, {V(R0+4*nt+2*h,2)}, {V(24+20*mm+4*nt+2*h,2)}")
        e.lg.clear()
        for i in range(10): e(f"v_cvt_pk_bf16_f32 v{24+i}, v{R0+2*i}, v{R0+2*i+1}")
        if final:
            e(f"""s_lshl_b32 s24, s62, 4
v_add_u32 v3, s24, v241
v_mul_u32_u24 v3, 1280, v3
v_lshlrev_b32 v34, 3, v240
v_add_u32 v3, v3, v34
s_mul_i32 s24, s{sJ}, 160""")
            for nt in range(5): e.vmem(f"buffer_store_dwordx2 {V(24+2*nt,2)}, v3, {OUT}, s24 offen offset:{32*nt}")
            return
        e(f"""s_mul_i32 s24, s62, 20480
s_add_u32 s24, s24, {XF[k]}
s_lshl_b32 s25, s{sJ}, 11
s_add_u32 s25, s25, s24
s_lshr_b32 s26, s{sJ}, 1
s_lshl_b32 s26, s26, 10
s_and_b32 s27, s{sJ}, 1
s_lshl_b32 s27, s27, 9
s_add_u32 s26, s26, s27
s_add_u32 s26, s26, 16384
s_add_u32 s26, s26, s24""")
        e.vmem(f"buffer_store_dwordx4 v[24:27], v1, {WS}, s25 offen sc1")
        e.vmem(f"buffer_store_dwordx4 v[28:31], v1, {WS}, s25 offen offset:1024 sc1")
        e.vmem(f"buffer_store_dwordx2 v[32:33], v2, {WS}, s26 offen sc1")
        e(f"v_pk_mul_f32 v[36:37], {V(R0,2)}, {V(R0,2)}\nv_pk_add_f32 v[34:35], {V(R0,2)}, {V(R0+2,2)}\nv_pk_fma_f32 v[36:37], {V(R0+2,2)}, {V(R0+2,2)}, v[36:37]")
        for i in range(2,10): e(f"v_pk_add_f32 v[34:35], v[34:35], {V(R0+2*i,2)}\nv_pk_fma_f32 v[36:37], {V(R0+2*i,2)}, {V(R0+2*i,2)}, v[36:37]")
        e("""v_add_f32 v34, v34, v35
v_add_f32 v35, v36, v37
v_mov_b32 v36, v34
v_mov_b32 v37, v35
v_permlane32_swap_b32 v34, v36
v_permlane32_swap_b32 v35, v37
v_add_f32 v34, v34, v36
v_add_f32 v35, v35, v37
v_mov_b32 v36, v34
v_mov_b32 v37, v35
v_permlane16_swap_b32 v34, v36
v_permlane16_swap_b32 v35, v37
v_add_f32 v34, v34, v36
v_add_f32 v35, v35, v37""")
        e(f"s_lshl_b32 s24, s60, 9\ns_lshl_b32 s25, s{sW}, 7\ns_add_u32 s24, s24, s25\ns_add_u32 s24, s24, {ST[k]}\ns_mov_b64 exec, 0xffff")
        e.vmem(f"buffer_store_dwordx2 v[34:35], v2, {WS}, s24 offen sc1"); e("s_mov_b64 exec, -1")
    def accreg(g,mm,nt): return V(24+20*mm+4*nt,4) if mm<3 else V(R0+4*nt,4)
    def wo(g,L):
        e=g.e; W=g.w
        for mm in range(4):
            e(f"s_add_u32 s24, s{sW}, {1+mm}\ns_and_b32 s24, s24, 3\ns_add_u32 s24, s24, s61\ns_mul_i32 s24, s24, 20480\ns_add_u32 s24, s24, {OB[L]}\ns_lshl_b32 s25, s{sW}, 12\ns_add_u32 s{45+mm}, s24, s25\ns_lshl_b32 s25, s{sW}, 10\ns_add_u32 s25, s25, 16384\ns_add_u32 s{50+mm}, s24, s25")
        g.poll(5*L+2,236)
        g.stamp(8+12*L)
        OF=lambda st,mm: 84+16*st+4*mm
        for st in range(5):
            for mm in range(4):
                if st<4: e.vmem(f"buffer_load_dwordx4 {V(OF(st,mm),4)}, v1, {WS}, s{45+mm} offen offset:{1024*st} sc1",("o",st,mm))
                else:
                    e.vmem(f"buffer_load_dwordx2 {V(OF(st,mm),2)}, v2, {WS}, s{50+mm} offen sc1")
                    e.vmem(f"buffer_load_dwordx2 {V(OF(st,mm)+2,2)}, v2, {WS}, s{50+mm} offen offset:512 sc1",("o",st,mm))
        W.issue(g.o.get("pfw",10))
        for st in range(5):
            for nt in range(5):
                a=W.use((L,"WO",st*5+nt))
                for mm in range(4):
                    e.wvm(("o",st,mm)); d=g.accreg(mm,nt)
                    e(f"{MF} {d}, {a}, {V(OF(st,mm),4)}, {d if (st or mm==3) else '0'}")
                W.rel((L,"WO",st*5+nt)); W.issue(1)
        g.reduce_epi(L,2*L+1,False)
        g.publish(5*L+3,pf=g.o.get("pfx",24))
    def push_w2(g,L,n0,n1,fixed):
        it=[]
        for k in range(n0,n1):
            t=(L,"W2",k); it.append((t,66,k))
            if t in g.maps: g.w.fixed[t]=g.maps[t]
        g.w.push(it)
    def ffn1(g,L):
        e=g.e
        g.poll(5*L+3,236)
        g.stamp(9+12*L)
        g.stage_x(XF[2*L+1],ST[2*L+1])
        e(f"s_mul_i32 s24, s{sW}, 14\ns_cmp_eq_u32 s{sW}, 3\ns_cselect_b32 s24, 41, s24\ns_mov_b32 s67, s24\ns_mul_i32 s25, s{sJ}, 54\ns_add_u32 s24, s24, s25\ns_mul_i32 s24, s24, 5120\ns_add_u32 s66, s24, {W_2}")
        g.w.cursor(66)
        NW2=40
        aH=(56,72); cS=(176,180); bB=(184,188)
        def ld_cb(ps):
            e(f"s_add_u32 s24, s63, {ps}\ns_lshl_b32 s25, s24, 6\ns_lshl_b32 s24, s24, 7\ns_add_u32 s24, s24, {CS_1}\nv_lshlrev_b32 v3, 4, v240\nv_lshlrev_b32 v192, 3, v240")
            for t in range(2):
                e.vmem(f"buffer_load_dwordx4 {V(cS[t]+16*ps,4)}, v3, {WS}, s24 offen offset:{64*t}",("cb",ps))
                e.vmem(f"buffer_load_dwordx2 {V(bB[t]+16*ps,2)}, v192, {B1}, s25 offen offset:{32*t}",("cb",ps))
        def one_pass(ps,pf):
            W=g.w
            e.wvm(("cb",ps))
            for t in range(2):
                b=bB[t]+16*ps
                e(f"v_and_b32 v{b+3}, 0xffff0000, v{b+1}\nv_lshlrev_b32 v{b+2}, 16, v{b+1}\nv_and_b32 v{b+1}, 0xffff0000, v{b}\nv_lshlrev_b32 v{b}, 16, v{b}")
                g.init_acc(aH[t],cS[t]+16*ps,False)
            g.gemm_x([(aH[t],False,(lambda p,t=t:(L,"W1",ps,2*p+t))) for t in range(2)],pf)
            e(f"s_add_u32 s24, s63, {ps}\ns_lshl_b32 s24, s24, 10\ns_mul_i32 s25, s61, 55296\ns_add_u32 s24, s24, s25\ns_add_u32 s24, s24, {HB[L]}")
            for m in range(4):
                for t in range(2):
                    a=aH[t]+4*m; b=bB[t]+16*ps
                    for r in range(4): e(f"v_fma_f32 v{a+r}, v{a+r}, v{140+m}, v{b+r}")
                    for r in range(4): e(f"v_max_f32 v{a+r}, 0, v{a+r}")
                    for h in range(2): e(f"v_pk_mul_f32 {V(a+2*h,2)}, {V(a+2*h,2)}, {V(a+2*h,2)}")
                    T=24+4*m+2*t
                    e(f"v_cvt_pk_bf16_f32 v{T}, v{a}, v{a+1}\nv_cvt_pk_bf16_f32 v{T+1}, v{a+2}, v{a+3}")
                e.vmem(f"buffer_store_dwordx4 {V(24+4*m,4)}, v1, {WS}, s24 offen sc1")
                if m<3: e("s_add_u32 s24, s24, 55296")
        def path(np_):
            def fn():
                W=g.w
                while W.q and W.q[0][0][1]=="W1": assert W.issue(1)==1
                assert not W.q
                if np_>=1: ld_cb(0)
                if np_==2:
                    ld_cb(1); g.w1_cursor(65,1); W.push([((L,"W1",1,k),65,k) for k in range(40)])
                if np_==0:
                    for k in range(40): W.rel((L,"W1",0,k))
                g.push_w2(L,0,NW2,16)
                W.issue(g.o.get("pf1",16))
                e.wvm0(); g.stats_finish()
                g.stamp(10+12*L)
                if np_>=1: g.load_stats(False)
                for ps in range(np_): one_pass(ps,lambda p:3)
                while W.q: assert W.issue(1)==1
                for t_,sl in W.slot.items(): g.maps.setdefault(t_,sl)
            return fn
        g.fork([(f"s_cmp_lt_u32 s{sW}, 3",path(2)),(f"s_cmp_lt_u32 s{sJ}, 6",path(1)),(None,path(0))])
        g.publish(5*L+4)
    def ffn2(g,L):
        e=g.e; W=g.w; last=(L==1)
        for mm in range(4):
            e(f"s_add_u32 s24, s{sW}, {1+mm}\ns_and_b32 s24, s24, 3\ns_add_u32 s24, s24, s61\ns_mul_i32 s24, s24, 54\ns_add_u32 s24, s24, s67\ns_lshl_b32 s24, s24, 10\ns_add_u32 s{45+mm}, s24, {HB[L]}")
            W.cursor(45+mm)
        e(f"s_mul_i32 s24, s{sJ}, 160\nv_lshlrev_b32 v3, 3, v240")
        for nt in range(5): e.vmem(f"buffer_load_dwordx2 {V(84+2*nt,2)}, v3, {B2}, s24 offen offset:{32*nt}","b2")
        e.wvm("b2")
        for i in range(10):
            e(f"v_lshlrev_b32 v94, 16, v{84+i}\nv_and_b32 v95, 0xffff0000, v{84+i}\nv_pk_add_f32 {V(R0+2*i,2)}, {V(R0+2*i,2)}, v[94:95]")
        g.poll(5*L+4,236)
        g.stamp(11+12*L)
        it=[]
        for st in range(14):
            for mm in range(4): it.append(((L,"h",st,mm),45+mm,st," sc1"))
            for nt in range(5):
                k=st*5+nt
                if k>=40: it.append(((L,"W2",k),66,k))
        W.push(it)
        if not last:
            g.qkv_cursors(); g.push_kv(L+1)
        W.issue(24)
        for st in range(14):
            if st==13:
                for mm in range(4): W.use((L,"h",st,mm))
                for nt in range(5): W.use((L,"W2",st*5+nt))
                sk=e.lab("SK"); e(f"s_cmp_ge_u32 s{sW}, 2\ns_cbranch_scc1 {sk}")
            for nt in range(5):
                a=W.use((L,"W2",st*5+nt))
                for mm in range(4):
                    b=W.use((L,"h",st,mm)); d=g.accreg(mm,nt)
                    e(f"{MF} {d}, {a}, {b}, {d if (st or mm==3) else '0'}")
                    if mm==1 and st<13: W.issue(1)
                W.rel((L,"W2",st*5+nt))
                if st<13: W.issue(1)
            for mm in range(4): W.rel((L,"h",st,mm))
            if st==13: e(f"s_nop 7\n{sk}:")
        W.issue(g.o.get("pf2",16))
        g.reduce_epi(L,2,last)
        if not last: g.publish(5*L+5,pf=g.o.get("pf3",16))
def gen_main(name,opts):
    g=G(opts); e=g.e; upto=opts.get("upto",99)
    g.prologue(name)
    g.stamp(0)
    g.qkv_cursors(); g.push_kv(0)
    n=0
    for L in range(2):
        for ph,st in ((g.qkv,5),(g.attention,7),(g.wo,None),(g.ffn1,None),(g.ffn2,12)):
            if n>=upto: break
            ph(L); n+=1
            if st is not None: g.stamp(st+12*L)
    e("s_waitcnt vmcnt(0)\nM_END:\ns_endpgm")
    return fix_hazards(e.L)
```

```python
from emit import *
from lay import *
PREP="prep_kernel"
def srd(e,d,p,size):
    e(f"s_mov_b32 s{d}, s{p}\ns_mov_b32 s{d+1}, s{p+1}\ns_mov_b32 s{d+2}, {size}\ns_mov_b32 s{d+3}, 0x00020000")
def gen_prep():
    e=E()
    e(f""".globl {PREP}
.p2align 8
.type {PREP},@function
{PREP}:
s_cmp_ge_u32 s2, 504
s_cbranch_scc1 P_END
s_load_dwordx4 s[16:19], s[0:1], 0
s_load_dwordx2 s[20:21], s[0:1], 16
s_load_dwordx2 s[22:23], s[0:1], 32
s_load_dwordx2 s[24:25], s[0:1], 48
s_load_dwordx2 s[26:27], s[0:1], 80
s_and_b32 s3, s2, 7
s_mul_i32 s3, s3, 63
s_lshr_b32 s12, s2, 3
s_add_u32 s3, s3, s12
v_lshrrev_b32 v1, 6, v0
v_and_b32 v0, 63, v0
s_nop 0
v_readfirstlane_b32 s12, v1
v_lshlrev_b32 v2, 4, v0
v_lshlrev_b32 v3, 3, v0
v_lshrrev_b32 v4, 2, v0
v_and_b32 v5, 3, v0
s_mul_i32 s13, s12, 5120
v_add_u32 v3, s13, v3
s_mul_i32 s14, s12, 5
s_waitcnt lgkmcnt(0)""")
    srd(e,8,26,WS_USED)
    e("""s_cmp_lt_u32 s3, 120
s_cbranch_scc1 P_QKV
s_cmp_lt_u32 s3, 228
s_cbranch_scc1 P_W1
s_cmp_lt_u32 s3, 268
s_cbranch_scc1 P_WO
s_cmp_lt_u32 s3, 376
s_cbranch_scc1 P_W2
s_branch P_X""")
    def xrows(i):
        e(f"""s_add_u32 s30, s14, {i}
s_lshr_b32 s31, s30, 1
s_mul_i32 s31, s31, 80
s_and_b32 s32, s30, 1
s_lshl_b32 s32, s32, 5
s_add_u32 s31, s31, s32
s_sub_u32 s32, s30, 16
s_mul_i32 s32, s32, 160
s_add_u32 s32, s32, 64
s_cmp_lt_u32 s30, 16
s_cselect_b32 s31, s31, s32
s_cselect_b32 s32, 16, 80
s_add_u32 s32, s32, s31""")
    def loads(i,rowb,vo):
        e(f"""s_mul_i32 s31, s31, {rowb}
s_mul_i32 s32, s32, {rowb}
s_add_u32 s31, s31, s15
s_add_u32 s32, s32, s15""")
        e.vmem(f"buffer_load_dwordx2 v[{16+4*i}:{17+4*i}], {vo}, s[4:7], s31 offen")
        e.vmem(f"buffer_load_dwordx2 v[{18+4*i}:{19+4*i}], {vo}, s[4:7], s32 offen")
    def tail(cs,nm):
        e.wvm0()
        for i in range(10): e(f"ds_write_b64 v3, v[{16+2*i}:{17+2*i}] offset:{512*i}")
        e("s_waitcnt lgkmcnt(0)")
        for i in range(10): e(f"ds_read_b64_tr_b16 v[{16+2*i}:{17+2*i}], v3 offset:{512*i}")
        e("s_waitcnt lgkmcnt(0)")
        for i in range(5): e(f"buffer_store_dwordx4 v[{16+4*i}:{19+4*i}], v2, s[8:11], s{40+i} offen")
        if cs:
            e("v_mov_b32 v8, 0x3f803f80\nv_mov_b32 v9, 0x3f803f80\nv_mov_b32 v10, 0x3f803f80\nv_mov_b32 v11, 0x3f803f80")
            e("v_mov_b32 v12, 0\nv_mov_b32 v13, 0\nv_mov_b32 v14, 0\nv_mov_b32 v15, 0")
            for i in range(5): e(f"v_mfma_f32_16x16x32_bf16 v[12:15], v[{16+4*i}:{19+4*i}], v[8:11], v[12:15]")
            e(f"""s_lshl_b32 s13, s12, 10
v_add_u32 v6, s13, v2
s_barrier
ds_write_b128 v6, v[12:15] offset:20480
s_waitcnt lgkmcnt(0)
s_barrier
s_cmp_lg_u32 s12, 0
s_cbranch_scc1 P_FIN
ds_read_b128 v[16:19], v2 offset:{20480+1024}
ds_read_b128 v[20:23], v2 offset:{20480+2048}
ds_read_b128 v[24:27], v2 offset:{20480+3072}
s_waitcnt lgkmcnt(0)""")
            for r in range(4): e(f"v_add_f32 v{12+r}, v{12+r}, v{16+r}\nv_add_f32 v{20+r}, v{20+r}, v{24+r}")
            for r in range(4): e(f"v_add_f32 v{12+r}, v{12+r}, v{20+r}")
            e(f"""v_lshrrev_b32 v6, 4, v0
v_lshlrev_b32 v6, 4, v6
v_and_b32 v7, 15, v0
v_cmp_eq_u32 vcc, 0, v7
s_and_saveexec_b64 s[34:35], vcc
buffer_store_dwordx4 v[12:15], v6, s[8:11], s50 offen""")
        e("s_branch P_FIN")
    e("P_QKV:")
    srd(e,4,18,640*1920*2)
    e(f"""s_mul_i32 s33, s3, 4370
s_lshr_b32 s33, s33, 16
s_mul_i32 s34, s33, 15
s_sub_u32 s34, s3, s34
s_lshr_b32 s35, s34, 2
s_sub_u32 s36, s34, 12
s_cmp_lt_u32 s34, 12
s_cselect_b32 s35, s35, s36
s_add_u32 s35, s35, 1
s_cmp_eq_u32 s35, 3
s_cselect_b32 s35, 0, s35
s_mul_i32 s35, s35, 640
s_mul_i32 s36, s33, 80
s_add_u32 s35, s35, s36
s_and_b32 s36, s34, 3
s_mul_i32 s36, s36, 20
s_cmp_lt_u32 s34, 12
s_cselect_b32 s36, s36, 16
s_cselect_b32 s37, 8, 40
s_add_u32 s15, s35, s36
s_lshl_b32 s15, s15, 1
v_mul_lo_u32 v6, v5, s37
s_mov_b32 s37, 3840
v_mul_lo_u32 v7, v4, s37
v_add_u32 v6, v6, v7
s_lshl_b32 s50, s3, 6
s_add_u32 s50, s50, {CS_QKV}""")
    for i in range(5):
        xrows(i)
        e(f"s_mul_i32 s{40+i}, s3, 20\ns_add_u32 s{40+i}, s{40+i}, s30\ns_lshl_b32 s{40+i}, s{40+i}, 10\ns_add_u32 s{40+i}, s{40+i}, {W_QKV}")
        loads(i,3840,"v6")
    tail(True,"q")
    e("P_W1:")
    srd(e,4,22,640*1728*2)
    e(f"""s_sub_u32 s33, s3, 120
s_lshl_b32 s15, s33, 5
v_lshlrev_b32 v6, 3, v5
s_mov_b32 s37, 3456
v_mul_lo_u32 v7, v4, s37
v_add_u32 v6, v6, v7
s_lshl_b32 s50, s33, 6
s_add_u32 s50, s50, {CS_1}
s_lshr_b32 s34, s33, 1
s_mul_i32 s34, s34, 40
s_and_b32 s35, s33, 1
s_add_u32 s34, s34, s35""")
    for i in range(5):
        xrows(i)
        e(f"s_lshl_b32 s{40+i}, s30, 1\ns_add_u32 s{40+i}, s{40+i}, s34\ns_lshl_b32 s{40+i}, s{40+i}, 10\ns_add_u32 s{40+i}, s{40+i}, {W_1}")
        loads(i,3456,"v6")
    tail(True,"1")
    e("P_WO:")
    srd(e,4,20,640*640*2)
    e(f"""s_sub_u32 s33, s3, 228
s_lshl_b32 s15, s33, 5
s_mul_i32 s34, s33, 13108
s_lshr_b32 s34, s34, 16
s_mul_i32 s35, s34, 5
s_sub_u32 s35, s33, s35
s_mul_i32 s34, s34, 100
s_add_u32 s34, s34, s35
v_lshlrev_b32 v6, 3, v5
s_mov_b32 s37, 1280
v_mul_lo_u32 v7, v4, s37
v_add_u32 v7, v6, v7
v_lshrrev_b32 v8, 2, v4
v_mul_u32_u24 v8, 20, v8
v_and_b32 v9, 3, v4
v_add_u32 v8, v8, v9
v_mul_lo_u32 v8, v8, s37
v_add_u32 v8, v6, v8""")
    for i in range(5):
        e(f"""s_add_u32 s30, s14, {i}
s_lshr_b32 s31, s30, 1
s_mul_i32 s31, s31, 80
s_and_b32 s32, s30, 1
s_mul_i32 s32, s32, 40
s_add_u32 s31, s31, s32
s_sub_u32 s36, s30, 16
s_mul_i32 s32, s36, 160
s_add_u32 s32, s32, 16
s_lshr_b32 s38, s30, 2
s_and_b32 s39, s30, 3
s_cmp_lt_u32 s30, 16
s_cselect_b32 s31, s31, s32
s_cselect_b32 s32, 20, 80
s_cselect_b32 s38, s38, s36
s_cselect_b32 s39, s39, 4
s_cselect_b64 s[52:53], -1, 0
s_add_u32 s32, s32, s31
s_mul_i32 s38, s38, 5
s_add_u32 s38, s38, s39
s_mul_i32 s38, s38, 5
s_add_u32 s38, s38, s34
s_lshl_b32 s38, s38, 10
s_add_u32 s{40+i}, s38, {W_O}
v_cndmask_b32 v{40+i}, v8, v7, s[52:53]""")
        loads(i,1280,f"v{40+i}")
    tail(False,"o")
    e("P_W2:")
    srd(e,4,24,1728*640*2)
    e(f"""s_sub_u32 s33, s3, 268
s_mul_i32 s33, s33, 20
s_add_u32 s33, s33, s14
v_lshlrev_b32 v6, 3, v5
s_mov_b32 s37, 1280
v_mul_lo_u32 v7, v4, s37
v_add_u32 v6, v6, v7""")
    for i in range(5):
        e(f"""s_add_u32 s30, s33, {i}
s_mul_i32 s34, s30, 1214
s_lshr_b32 s34, s34, 16
s_mul_i32 s35, s34, 54
s_sub_u32 s35, s30, s35
s_lshl_b32 s15, s34, 5
s_mul_i32 s36, s34, 13108
s_lshr_b32 s36, s36, 16
s_mul_i32 s38, s36, 5
s_sub_u32 s38, s34, s38
s_mul_i32 s36, s36, 54
s_add_u32 s36, s36, s35
s_mul_i32 s36, s36, 5
s_add_u32 s36, s36, s38
s_lshl_b32 s36, s36, 10
s_add_u32 s{40+i}, s36, {W_2}
s_lshl_b32 s31, s35, 5
s_add_u32 s32, s31, 16""")
        loads(i,1280,"v6")
    tail(False,"2")
    e("P_X:")
    srd(e,4,16,2048*1280)
    e(f"""s_sub_u32 s33, s3, 376
v_and_b32 v7, 15, v0
v_mul_u32_u24 v6, 1280, v7
v_lshrrev_b32 v8, 4, v0
v_lshlrev_b32 v8, 3, v8
v_add_u32 v6, v6, v8
s_mul_i32 s34, s33, {16*1280}""".replace("v_mul_u32_u24 v6, 1280, v7","v_mul_u32_u24 v6, 0x500, v7"))
    for i in range(5):
        xrows(i)
        e(f"""s_lshl_b32 s31, s31, 1
s_lshl_b32 s32, s32, 1
s_add_u32 s31, s31, s34
s_add_u32 s32, s32, s34
s_mul_i32 s{40+i}, s33, 20
s_add_u32 s{40+i}, s{40+i}, s30
s_lshl_b32 s{40+i}, s{40+i}, 10
s_add_u32 s{40+i}, s{40+i}, {XF[0]}
s_cmp_lt_u32 s30, 16
s_cselect_b32 s{45+i}, 8, 512""")
        e.vmem(f"buffer_load_dwordx2 v[{16+4*i}:{17+4*i}], v6, s[4:7], s31 offen")
        e.vmem(f"buffer_load_dwordx2 v[{18+4*i}:{19+4*i}], v6, s[4:7], s32 offen")
    e.wvm0()
    e("v_lshlrev_b32 v9, 3, v0")
    for i in range(5):
        e(f"""s_cmp_eq_u32 s{45+i}, 8
s_cselect_b64 s[52:53], -1, 0
v_cndmask_b32 v10, v9, v2, s[52:53]
v_add_u32 v11, s{45+i}, v10
buffer_store_dwordx2 v[{16+4*i}:{17+4*i}], v10, s[8:11], s{40+i} offen
buffer_store_dwordx2 v[{18+4*i}:{19+4*i}], v11, s[8:11], s{40+i} offen""")
    e("v_mov_b32 v12, 0\nv_mov_b32 v13, 0\nv_mov_b32 v14, 0\nv_mov_b32 v15, 0\nv_mov_b32 v8, 0x3f803f80")
    for k in range(20): e(f"v_dot2_f32_bf16 v12, v{16+k}, v8, v12\ns_nop 2\nv_dot2_f32_bf16 v13, v{16+k}, v{16+k}, v13\ns_nop 2")
    for sw in ("v_permlane32_swap_b32","v_permlane16_swap_b32"):
        e(f"""v_mov_b32 v36, v12
v_mov_b32 v37, v13
s_nop 1
{sw} v12, v36
{sw} v13, v37
s_nop 1
v_add_f32 v12, v12, v36
v_add_f32 v13, v13, v37""")
    e(f"""s_lshr_b32 s34, s33, 2
s_lshl_b32 s34, s34, 3
s_lshl_b32 s35, s12, 1
s_add_u32 s34, s34, s35
s_lshl_b32 s34, s34, 9
s_and_b32 s35, s33, 3
s_lshl_b32 s35, s35, 7
s_add_u32 s34, s34, s35
s_add_u32 s34, s34, {ST[0]}
v_mov_b32 v14, 0
v_mov_b32 v15, 0
v_cmp_gt_u32 vcc, 16, v0
s_and_saveexec_b64 s[36:37], vcc
buffer_store_dwordx2 v[12:13], v9, s[8:11], s34 offen
buffer_store_dwordx2 v[14:15], v9, s[8:11], s34 offen offset:512
s_mov_b64 exec, s[36:37]
s_cmp_lt_u32 s33, 40
s_cbranch_scc0 P_FIN
s_cmp_eq_u32 s12, 0
s_cbranch_scc0 P_FIN
s_lshl_b32 s34, s33, 7
s_add_u32 s34, s34, {FLAGS}
v_lshlrev_b32 v9, 2, v0
v_cmp_gt_u32 vcc, 32, v0
s_and_saveexec_b64 s[36:37], vcc
buffer_store_dword v14, v9, s[8:11], s34 offen
P_FIN:
s_waitcnt vmcnt(0)
P_END:
s_endpgm""")
    return fix_hazards(e.L)
def desc(name,vg,acc,sg=102):
    return f""".amdhsa_kernel {name}
  .amdhsa_next_free_vgpr {vg}
  .amdhsa_next_free_sgpr {sg}
  .amdhsa_accum_offset {acc}
  .amdhsa_group_segment_fixed_size 0
  .amdhsa_kernarg_size 88
  .amdhsa_user_sgpr_count 2
  .amdhsa_user_sgpr_kernarg_segment_ptr 1
  .amdhsa_system_sgpr_workgroup_id_x 1
.end_amdhsa_kernel
"""
```

```python
KB=1024
off=0
def alloc(n):
    global off
    o=off; off+=(n+4095)//4096*4096; return o
W_QKV=alloc(8*15*20*KB)
W_O=alloc(8*4*5*5*KB)
W_1=alloc(54*20*2*KB)
W_2=alloc(8*54*5*KB)
CS_QKV=alloc(120*64)
CS_1=alloc(108*64)
FLAGS=alloc(32*128+8*128)
XF=[alloc(128*20*KB) for _ in range(4)]
ST=[alloc(32*8*64*8) for _ in range(4)]
KBUF=[alloc(32*8*4*4*KB) for _ in range(2)]
VBUF=[alloc(32*8*5*2*KB) for _ in range(2)]
OB=[alloc(128*20*KB) for _ in range(2)]
HB=[alloc(128*54*KB) for _ in range(2)]
WS_USED=off
def xk_rows(p):
    if p<16: b=80*(p>>1)+32*(p&1); return b,b+16
    e=p-16; return 160*e+64,160*e+144
QKV_SEC=[1]*4+[2]*4+[0]*4+[1,2,0]
if __name__=="__main__": print(WS_USED, WS_USED/2**20)
```

```python
import sys
from emit import *
from lay import *
from gen_prep import gen_prep, desc, PREP
import gen_main
MAIN="interleave_layers__sliding_block__dense_activation_squared_relu__prompt_kernel"
def build(opts=None):
    opts=opts or {}
    hdr=f"""; generated by dev/gen.py (hand-written generator)
; @launch kernel={PREP} grid=(504,1,1) block=(256,1,1) lds=24576
; @launch kernel={MAIN} grid=(256,1,1) block=(256,1,1) lds=102400
.amdgcn_target "amdgcn-amd-amdhsa--gfx950"
.text
"""
    L=gen_prep()+gen_main.gen_main(MAIN,opts)
    body="\n".join(L)+"\n"
    ro='.section .rodata,"a"\n.p2align 6\n'+desc(PREP,64,64)+".p2align 6\n"+desc(MAIN,512,256)
    return hdr+body+ro
if __name__=="__main__":
    s=build()
    open("interleave_layers__sliding_block__dense_activation_squared_relu__prompt.s","w").write(s)
    print(len(s),"bytes",s.count("\n"),"lines")
```

```python
from emit import *
from lay import *
import copy
MF="v_mfma_f32_16x16x32_bf16"
WS="s[4:7]"; OUT="s[8:11]"; B1="s[12:15]"; B2="s[16:19]"
sC,sJ,sW=20,21,22
sFL=23
sT=[24,25,26,27,28,29,30,31]
R0=4
LDS_ST=102400; LDS_QX=103424; LDS_RED=0; OEX=107520-61440
class WQ:
    def __init__(s,e): s.e=e; s.free=list(range(64)); s.q=[]; s.slot={}; s.cur={}; s.fixed={}
    def copy(s,e):
        c=WQ(e); c.free=list(s.free); c.q=list(s.q); c.slot=dict(s.slot); c.cur=dict(s.cur); c.fixed=dict(s.fixed); return c
    def push(s,items): s.q+=items
    def cursor(s,sg): s.cur[sg]=0
    def issue(s,n=1,mod=""):
        k=0
        while k<n and s.q and s.free:
            it=s.q[0]; tag,sg,idx=it[:3]; m2=it[3] if len(it)>3 else mod
            if tag in s.fixed:
                if s.fixed[tag] not in s.free: break
                sl=s.fixed[tag]; s.free.remove(sl)
            else:
                res=set(s.fixed[t[0]] for t in s.q if t[0] in s.fixed)
                cand=[x for x in s.free if x not in res] or s.free
                sl=cand[0]; s.free.remove(sl)
            s.q.pop(0); s.slot[tag]=sl
            while s.cur[sg]<idx//4: s.e(f"s_add_u32 s{sg}, s{sg}, 4096"); s.cur[sg]+=1
            assert s.cur[sg]==idx//4,(tag,sg,idx,s.cur[sg])
            o=(idx%4)*1024
            s.e.vmem(f"buffer_load_dwordx4 {A(4*sl,4)}, v1, {WS}, s{sg} offen"+(f" offset:{o}" if o else "")+m2,tag); k+=1
        return k
    def ensure(s,tag):
        while tag not in s.slot:
            assert s.q and s.free,("cannot ensure",tag,len(s.q),len(s.free))
            assert s.issue(1)==1,("stuck",tag,s.q[0])
    def use(s,tag):
        s.ensure(tag); s.e.wvm(tag); return A(4*s.slot[tag],4)
    def rel(s,tag): s.free.append(s.slot.pop(tag))
    def take(s,tag): sl=s.free.pop(0); s.slot[tag]=sl; return sl
def interleave(e,mains,fill,per=1,lead=0):
    fill=list(fill); n=len(mains)
    for i,m in enumerate(mains):
        m()
        rem=n-i
        k=-(-len(fill)//rem) if rem>0 else len(fill)
        for _ in range(min(k,len(fill))): fill.pop(0)()
    for f in fill: f()
class G:
    def __init__(g,opts):
        opts=dict(opts)
        if opts.get('plain'): opts['xmode']='plain'
        g.o=opts; g.e=E(); g.w=WQ(g.e); g.nst=0; g.maps={}; g.NW2=opts.get('nw2',48); g.SK='' if opts.get('plainkv') else ' sc1';  g.names=[]; g.curL=0
    def stamp(g,i):
        if not g.o.get("prof"): return
        if g.o.get("fine") is not None:
            if isinstance(i,int): i=f"s{i}"
            if g.curL!=g.o["fine"] and i!="s0": return
            if i not in g.names: g.names.append(i)
            i=g.names.index(i)
            assert i<32
        elif not isinstance(i,int): return
        e=g.e
        e("s_memtime s[98:99]"); e.wlg0()
        e(f"v_mov_b32 v255, s98\ns_lshl_b32 s98, s2, 2\ns_add_u32 s98, s98, s{sW}\ns_lshl_b32 s98, s98, 7\ns_add_u32 s98, s98, {(60<<20)+4*i}")
        e("s_mov_b64 exec, 1"); e.vmem(f"buffer_store_dword v255, off, s[100:103], s98".replace("s[100:103]","s[92:95]")); e("s_mov_b64 exec, -1")
    def xst(g,txt,tag=None):
        e=g.e; m=g.o.get('xmode','auto')
        if m=='sc1': return e.vmem(txt+" sc1")
        if m=='plain': return e.vmem(txt)
        a=e.lab("XS"); b=e.lab("XE")
        e(f"s_cmp_eq_u32 s72, 0\ns_cbranch_scc1 {a}")
        e.vmem(txt)
        e(f"s_branch {b}\n{a}:\n{txt} sc1\n{b}:")
    def publish(g,seq,pf=0):
        e=g.e; e.vm.p["__st"]=0
        if pf: g.w.issue(pf)
        e.wvm("__st")
        e(f"v_mov_b32 v3, {seq}\ns_mov_b64 exec, 1")
        t=f"buffer_store_dword v3, off, {WS}, s{sFL}"
        if seq%5==1: e.vmem(t+" sc1")
        else: g.xst(t)
        e("s_mov_b64 exec, -1")
    def poll(g,seq,vaddr):
        e=g.e; l=e.lab("PL"); d=e.lab("PD")
        if seq==1 and g.o.get('xmode','auto')=='auto':
            e(f"s_lshl_b32 s25, s{sC}, 5\ns_add_u32 s25, s25, {FLAGS+4096}\nv_and_b32 v217, 7, v0\nv_lshlrev_b32 v217, 2, v217\nv_add_u32 v217, s25, v217")
            e(f"s_mov_b32 s24, {g.o.get('spin',30000)}\n{l}:")
            e(f"buffer_load_dword v3, v{vaddr}, {WS}, 0 offen sc1\nbuffer_load_dword v216, v217, {WS}, 0 offen sc1\ns_waitcnt vmcnt(0)\nv_cmp_eq_u32 vcc, 0, v216\ns_nop 0\nv_cndmask_b32 v3, v3, v216, vcc\nv_cmp_gt_u32 vcc, {seq}, v3\ns_sub_u32 s24, s24, 1\ns_cbranch_scc1 {d}\ns_cbranch_vccnz {l}\n{d}:")
            e(f"v_cmp_eq_u32 vcc, s73, v216\ns_nop 4\ns_cmp_eq_u64 vcc, -1\ns_cselect_b32 s72, 1, 0")
            if g.o.get('dbgsame'): e(f"v_mov_b32 v216, s72\ns_lshl_b32 s25, s2, 2\ns_add_u32 s25, s25, {61<<20}\ns_mov_b64 exec, 1\nbuffer_store_dword v216, off, s[92:95], s25\ns_mov_b64 exec, -1")
            e.vm.clear(); return
        e(f"s_mov_b32 s24, {g.o.get('spin',30000)}\n{l}:")
        e(f"buffer_load_dword v3, v{vaddr}, {WS}, 0 offen sc1\ns_waitcnt vmcnt(0)\nv_cmp_gt_u32 vcc, {seq}, v3\ns_sub_u32 s24, s24, 1\ns_cbranch_scc1 {d}\ns_cbranch_vccnz {l}\n{d}:")
        e.vm.clear()
    def fork(g,paths):
        e=g.e; end=e.lab("FE"); vm0,lg0,w0=e.vm,e.lg,g.w; res=[]; xn0=getattr(g,'xn',0)
        labs=[e.lab("FK") for _ in paths]
        for (c,_),l in zip(paths[:-1],labs): e(c+f"\ns_cbranch_scc1 {l}")
        e(f"s_branch {labs[-1]}")
        for (c,fn),l in zip(paths,labs):
            e.vm=vm0.copy(); e.lg=lg0.copy(); g.w=w0.copy(e); g.xn=xn0
            e(f"{l}:"); fn(); e(f"s_nop 7\ns_branch {end}"); res.append((e.vm,e.lg,g.w))
        e(f"{end}:")
        e.vm,e.lg,g.w=res[0]
        for vm,lg,w in res[1:]:
            e.vm.merge(vm); e.lg.merge(lg)
            assert w.slot==g.w.slot and w.q==g.w.q,(w.slot,g.w.slot,len(w.q),len(g.w.q))
            for k_ in list(g.w.cur):
                if w.cur.get(k_)!=g.w.cur[k_]: del g.w.cur[k_]
        g.w.free=sorted(g.w.free)
    def prologue(g,name):
        e=g.e
        e(f""".globl {name}
.p2align 8
.type {name},@function
{name}:
s_cmp_ge_u32 s2, 256
s_cbranch_scc1 M_END
s_load_dwordx2 s[24:25], s[0:1], 40
s_load_dwordx2 s[26:27], s[0:1], 56
s_load_dwordx2 s[28:29], s[0:1], 64
s_load_dwordx2 s[30:31], s[0:1], 80
v_lshrrev_b32 v1, 6, v0
v_and_b32 v0, 63, v0
s_nop 0
v_readfirstlane_b32 s{sW}, v1
v_lshlrev_b32 v1, 4, v0
v_lshlrev_b32 v2, 3, v0""")
        if g.o.get("xmap"):
            e(f"s_lshr_b32 s{sC}, s2, 3\ns_and_b32 s{sJ}, s2, 7")
        else:
            e(f"s_and_b32 s{sC}, s2, 7\ns_lshl_b32 s{sC}, s{sC}, 2\ns_lshr_b32 s{sJ}, s2, 6\ns_add_u32 s{sC}, s{sC}, s{sJ}\ns_lshr_b32 s{sJ}, s2, 3\ns_and_b32 s{sJ}, s{sJ}, 7")
        e("s_waitcnt lgkmcnt(0)")
        for d,p,sz in ((4,30,WS_USED),(8,28,2048*1280),(12,24,3456),(16,26,1280),(92,30,64<<20)):
            if d==92 and not g.o.get("prof"): continue
            e(f"s_mov_b32 s{d}, s{p}\ns_mov_b32 s{d+1}, s{p+1}\ns_mov_b32 s{d+2}, {sz}\ns_mov_b32 s{d+3}, 0x00020000")
        e(f"""s_mov_b32 s72, 0
s_getreg_b32 s73, hwreg(HW_REG_XCC_ID, 0, 4)
s_add_u32 s73, s73, 1
s_lshl_b32 s24, s{sC}, 5
s_lshl_b32 s25, s{sJ}, 2
s_add_u32 s24, s24, s25
s_add_u32 s24, s24, {FLAGS+4096}
v_mov_b32 v3, s73
s_mov_b64 exec, 1""")
        e.vmem(f"buffer_store_dword v3, off, {WS}, s24 sc1"); e("s_mov_b64 exec, -1")
        e(f"""s_lshl_b32 s24, s{sC}, 7
s_add_u32 s24, s24, {FLAGS}
s_lshl_b32 s25, s{sJ}, 4
s_lshl_b32 s26, s{sW}, 2
s_add_u32 s25, s25, s26
s_add_u32 s{sFL}, s24, s25
v_and_b32 v236, 31, v0
v_lshlrev_b32 v236, 2, v236
v_add_u32 v236, s24, v236
v_lshrrev_b32 v3, 2, v0
v_cmp_gt_u32 vcc, 20, v0
v_cndmask_b32 v3, 0, v3, vcc
v_sub_u32 v237, s{sC}, v3
v_cmp_gt_i32 vcc, 0, v237
v_mov_b32 v3, s{sC}
v_cndmask_b32 v237, v237, v3, vcc
v_lshlrev_b32 v237, 7, v237
v_and_b32 v3, 3, v0
v_lshlrev_b32 v3, 2, v3
v_add_u32 v237, v237, v3
s_lshl_b32 s25, s{sJ}, 4
s_add_u32 s25, s25, {FLAGS}
v_add_u32 v237, s25, v237
v_add_u32 v238, 61440, v1
v_add_u32 v239, 61440, v2
v_lshrrev_b32 v240, 4, v0
v_and_b32 v241, 15, v0
s_mul_i32 s60, s{sC}, 8
s_add_u32 s60, s60, s{sJ}
s_mov_b32 s68, {"0" if g.o.get("fakej") else "s21"}
s_lshl_b32 s61, s{sC}, 2
s_add_u32 s62, s61, s{sW}""")
        e(f"""s_mul_i32 s24, s62, 20480
s_add_u32 s24, s24, {XF[0]}
s_lshl_b32 s25, s{sJ}, 11
s_add_u32 s25, s25, s24
s_lshr_b32 s26, s{sJ}, 1
s_lshl_b32 s26, s26, 10
s_and_b32 s27, s{sJ}, 1
s_lshl_b32 s27, s27, 9
s_add_u32 s26, s26, s27
s_add_u32 s26, s26, 16384
s_add_u32 s26, s26, s24""")
        e.vmem(f"buffer_load_dwordx4 v[24:27], v1, {WS}, s25 offen","r0")
        e.vmem(f"buffer_load_dwordx4 v[28:31], v1, {WS}, s25 offen offset:1024","r1")
        e.vmem(f"buffer_load_dwordx2 v[32:33], v2, {WS}, s26 offen","r2")
        e.wvm("r2")
        for i in range(10):
            e(f"v_lshlrev_b32 v{R0+2*i}, 16, v{24+i}\nv_and_b32 v{R0+2*i+1}, 0xffff0000, v{24+i}")
    def qkv_cursors(g):
        e=g.e
        e(f"""s_mul_i32 s24, s68, {15*20480}
s_add_u32 s24, s24, {W_QKV}
s_mul_i32 s25, s{sW}, 20480
s_add_u32 s40, s24, s25
s_add_u32 s41, s40, {4*20480}
s_add_u32 s42, s40, {8*20480}
s_add_u32 s43, s40, {12*20480}""")
        for s in (40,41,42,43): g.w.cursor(s)
    def push_kv(g,L):
        it=[]
        for p in range(20): it+=[((L,"K",p),40,p),((L,"V",p),41,p)]
        g.w.push(it)
    def stage_x(g,xb,stb,extra=None):
        e=g.e
        e(f"s_lshl_b32 s26, s60, 9\ns_and_b32 s26, s26, 0xfffff000\ns_lshl_b32 s27, s{sW}, 7\ns_add_u32 s26, s26, s27\ns_add_u32 s26, s26, {stb}")
        e("v_lshrrev_b32 v24, 3, v0\nv_lshlrev_b32 v24, 9, v24\nv_and_b32 v25, 7, v0\nv_lshlrev_b32 v25, 4, v25\nv_add_u32 v24, v24, v25")
        e.vmem(f"buffer_load_dwordx4 v[28:31], v24, {WS}, s26 offen","stat")
        e(f"s_mul_i32 s69, s62, 20480\ns_add_u32 s69, s69, {xb}\ns_mul_i32 s70, s{sW}, 20480")
        g.xn=0
        for p in range(g.o.get("xup",10)):
            g.xdma()
            if extra: extra(p)
        e.wvm("stat")
        for r in range(4): e(f"v_mov_b32 v{32+r}, v{28+r}")
        for r in range(4): e(f"v_permlane32_swap_b32 v{28+r}, v{32+r}")
        for r in range(4): e(f"v_add_f32 v{28+r}, v{28+r}, v{32+r}")
        for r in range(4): e(f"v_mov_b32 v{32+r}, v{28+r}")
        for r in range(4): e(f"v_permlane16_swap_b32 v{28+r}, v{32+r}")
        for r in range(4): e(f"v_add_f32 v{28+r}, v{28+r}, v{32+r}")
        for r in range(4): e(f"v_add_f32_dpp v{28+r}, v{28+r}, v{28+r} row_ror:8 row_mask:0xf bank_mask:0xf")
        e("s_mov_b32 s26, 0xbacccccd\ns_mov_b32 s27, 0x3acccccd")
        e(f"""v_mul_f32 v32, s26, v28
v_mul_f32 v33, s26, v30
v_mul_f32 v34, s27, v29
v_mul_f32 v35, s27, v31
v_fma_f32 v34, -v32, v32, v34
v_fma_f32 v35, -v33, v33, v35
v_max_f32 v34, 0, v34
v_max_f32 v35, 0, v35
v_add_f32 v34, 0x3727c5ac, v34
v_add_f32 v35, 0x3727c5ac, v35
v_rsq_f32 v34, v34
v_rsq_f32 v35, v35
v_and_b32 v24, 7, v0
v_lshlrev_b32 v24, 3, v24
s_lshl_b32 s26, s{sW}, 6
s_add_u32 s26, s26, {LDS_ST}
v_add_u32 v24, s26, v24
s_mov_b64 exec, 0xff""")
        e.ds("ds_write_b64 v24, v[32:33]"); e.ds("ds_write_b64 v24, v[34:35] offset:256"); e("s_mov_b64 exec, -1")
    def xdma(g):
        e=g.e; p=g.xn
        if p>=20: return
        g.xn+=1
        if p and p%4==0: e("s_add_u32 s69, s69, 4096\ns_add_u32 s70, s70, 4096")
        e("s_mov_b32 m0, s70")
        e.vmem(f"buffer_load_dwordx4 v1, {WS}, s69 offen offset:{(p%4)*1024} lds",("xd",p))
    def chunk(g,k):
        e=g.e
        while g.xn<5*k+5: g.xdma()
        e.wvm(("xd",5*k+4))
        if k==0: e.wlg0()
        e("s_barrier")
    def xread(g,p,m,dst):
        e=g.e
        if p<16:
            b,o=("v1",m*20480+p*1024) if m<3 else ("v238",p*1024)
            e.ds(f"ds_read_b128 {V(dst,4)}, {b} offset:{o}",("x",p,m))
        else:
            b,o=("v2",m*20480+p*1024) if m<3 else ("v239",p*1024)
            e.ds(f"ds_read_b64 {V(dst,2)}, {b} offset:{o}")
            e.ds(f"ds_read_b64 {V(dst+2,2)}, {b} offset:{o+512}",("x",p,m))
    def gemm_x(g,tiles,pf,chunks=False):
        e=g.e
        XB=lambda p,m: 24+16*(p&1)+4*m
        if chunks: g.chunk(0)
        for m in range(4): g.xread(0,m,XB(0,m))
        for p in range(20):
            if chunks and p in (4,9,14): g.chunk((p+1)//5)
            mains=[]
            for (acc,sw,tf) in tiles:
                for m in range(4):
                    def mm(acc=acc,sw=sw,tf=tf,m=m,p=p):
                        a=g.w.use(tf(p)); e.wlg(("x",p,m)); x=V(XB(p,m),4); d=V(acc+4*m,4); c=d if p else "0"
                        e(f"{MF} {d}, {x}, {a}, {c}" if sw else f"{MF} {d}, {a}, {x}, {c}")
                        if m==3: g.w.rel(tf(p))
                    mains.append(mm)
            fl=[]
            if p<19:
                for m in range(4): fl.append(lambda m=m,p=p: g.xread(p+1,m,XB(p+1,m)))
            if chunks and p%g.o.get("xev",1)==0: fl.append(g.xdma)
            for _ in range(pf(p)): fl.append(lambda: g.w.issue(1))
            interleave(e,mains,fl)
    def load_stats(g,row):
        e=g.e
        e(f"v_lshlrev_b32 v3, 2, v241\nv_add_u32 v3, {LDS_ST}, v3")
        for m in range(4):
            e.ds(f"ds_read_b32 v{136+m}, v3 offset:{64*m}","s"); e.ds(f"ds_read_b32 v{140+m}, v3 offset:{256+64*m}","s")
        if row:
            e(f"v_lshlrev_b32 v3, 4, v240\nv_add_u32 v3, {LDS_ST}, v3")
            for m in range(4):
                e.ds(f"ds_read_b128 {V(144+4*m,4)}, v3 offset:{64*m}","s"); e.ds(f"ds_read_b128 {V(160+4*m,4)}, v3 offset:{256+64*m}","s")
        e.wlg0()
    def bc(g,r):
        return (V(r&~1,2), r&1)
    def norm(g,acc,m,cs,sw,rs=None,mul=True):
        e=g.e; a=acc+4*m
        for h in range(2):
            d=V(a+2*h,2)
            if sw:
                pr,o=g.bc(cs); e(f"v_pk_fma_f32 {d}, {V(144+4*m+2*h,2)}, {pr}, {d} op_sel:[0,{o},0] op_sel_hi:[1,{o},1]")
            else:
                pr,o=g.bc(136+m); e(f"v_pk_fma_f32 {d}, {V(cs+2*h,2)}, {pr}, {d} op_sel:[0,{o},0] op_sel_hi:[1,{o},1]")
        if not mul: return
        for h in range(2):
            d=V(a+2*h,2)
            if sw: e(f"v_pk_mul_f32 {d}, {d}, {V(160+4*m+2*h,2)}")
            else:
                pr,o=g.bc((rs or 140)+m); e(f"v_pk_mul_f32 {d}, {d}, {pr} op_sel:[0,{o}] op_sel_hi:[1,{o}]")
    def norm_cvt(g,acc,m,cs,dst,sw,rs=None):
        g.norm(acc,m,cs,sw,rs); a=acc+4*m
        g.e(f"v_cvt_pk_bf16_f32 v{dst}, v{a}, v{a+1}\nv_cvt_pk_bf16_f32 v{dst+1}, v{a+2}, v{a+3}")
    def qkv(g,L):
        e=g.e; xb=XF[2*L]; stb=ST[2*L]
        aK,aV,aX,aQ,aQX=56,72,88,104,120
        cK,cQ,cX,cV=176,180,184,188
        def path(wv):
            def fn():
                W=g.w
                hasx=wv<3;
                e(f"s_mul_i32 s24, s{sJ}, 960\ns_lshl_b32 s25, s{sW}, 6\ns_add_u32 s24, s24, s25\ns_add_u32 s24, s24, {CS_QKV}\nv_lshlrev_b32 v3, 4, v240\nv_lshlrev_b32 v192, 2, v241")
                e.vmem(f"buffer_load_dwordx4 {V(cK,4)}, v3, {WS}, s24 offen","cs"); e.vmem(f"buffer_load_dwordx4 {V(cQ,4)}, v3, {WS}, s24 offen offset:512","cs")
                e.vmem(f"buffer_load_dword v{cV}, v192, {WS}, s24 offen offset:256","cs")
                if wv==0 or wv==2: e.vmem(f"buffer_load_dwordx4 {V(cX,4)}, v3, {WS}, s24 offen offset:768","cs")
                if wv==1: e.vmem(f"buffer_load_dword v{cX}, v192, {WS}, s24 offen offset:768","cs")
                rest=W.q; W.q=[]
                if hasx:
                    kv={t[0]:t for t in rest}; it=[]
                    for p in range(20):
                        for n in ("K","V"):
                            if (L,n,p) in kv: it.append(kv[(L,n,p)])
                        it.append(((L,"X",p),43,p))
                    W.push(it)
                else: W.push(rest)
                W.push([((L,"Q",p),42,p) for p in range(20)])
                if L>0:
                    W.issue(g.o.get("pfq",0)); g.poll(5*L,236)
                g.stamp(1+12*L)
                g.stage_x(xb,stb,(lambda p: W.issue(g.o.get("pf0",2))) if L==0 else None)
                g.stamp(2+12*L)
                tiles=[(aK,False,lambda p:(L,"K",p)),(aV,True,lambda p:(L,"V",p))]
                if hasx: tiles.append((aX,wv==1,lambda p:(L,"X",p)))
                g.gemm_x(tiles,lambda p:(3 if hasx else 2) if L==0 else g.o.get("pfK",2),chunks=True)
                g.stamp(3+12*L)
                g.load_stats(True); e.wvm("cs")
                e(f"s_lshl_b32 s24, s60, 14\ns_add_u32 s24, s24, {KBUF[L]}\ns_lshl_b32 s25, s{sW}, 12\ns_add_u32 s25, s25, s24\ns_mul_i32 s26, s60, 10240\ns_add_u32 s26, s26, {VBUF[L]}\ns_lshl_b32 s27, s{sW}, 11\ns_add_u32 s27, s27, s26\ns_add_u32 s26, s26, 8192")
                T=24
                if wv==2:
                    for m in range(4): e(f"v_mul_f32 v{194+m}, 0x3ea52b5c, v{140+m}")
                if wv in (0,2):
                    for m in range(4):
                        g.norm_cvt(aX,m,cX,T+16+2*m,False,rs=(140 if wv==0 else 194))
                        e.ds(f"ds_write_b64 v239, {V(T+16+2*m,2)} offset:{LDS_QX-61440+512*m+(2048 if wv==0 else 0)}")
                for m in range(4):
                    g.norm_cvt(aV,m,cV,T+24+2*m,True)
                    if m&1: e.vmem(f"buffer_store_dwordx4 {V(T+24+2*m-2,4)}, v1, {WS}, s27 offen offset:{1024*(m>>1)}{g.SK}")
                if wv==1:
                    for m in range(4):
                        g.norm_cvt(aX,m,cX,T+16+2*m,True)
                        if m&1: e.vmem(f"buffer_store_dwordx4 {V(T+16+2*m-2,4)}, v1, {WS}, s26 offen offset:{1024*(m>>1)}{g.SK}")
                for m in range(4):
                    g.norm_cvt(aK,m,cK,T+4*m,False)
                e.wlg0(); e("s_barrier")
                for m in range(4): e.ds(f"ds_read_b64 {V(T+4*m+2,2)}, v239 offset:{LDS_QX-61440+2048+512*m}",("kx",m))
                for m in range(4): e.ds(f"ds_read_b64 {V(202+4*m,2)}, v239 offset:{LDS_QX-61440+512*m}",("qx",m))
                for m in range(4):
                    e.wlg(("kx",m)); e.vmem(f"buffer_store_dwordx4 {V(T+4*m,4)}, v1, {WS}, s25 offen offset:{1024*m}{g.SK}")
                e.wlg0()
                e(f"v_cmp_eq_u32 vcc, s{sW}, v240")
                for m in range(4):
                    for r in range(2): e(f"v_cndmask_b32 v{202+4*m+r}, 0, v{202+4*m+r}, vcc")
                g.stamp("kv_st")
                g.publish(5*L+1,pf=g.o.get("pfkv",20))
                g.stamp(4+12*L)
                tiles=[(aQ,False,lambda p:(L,"Q",p))]
                g.gemm_x(tiles,lambda p:g.o.get("pfQ",2))
                g.stamp("q_mm")
                e("s_mov_b32 s24, 0x3ea52b5c")
                for m in range(4): e(f"v_mul_f32 v{140+m}, s24, v{140+m}")
                for m in range(4):
                    g.norm_cvt(aQ,m,cQ,200+4*m,False)
                while W.q: assert W.issue(1)==1
                for t_,sl in W.slot.items(): g.maps.setdefault(t_,sl)
            return fn
        g.fork([(f"s_cmp_eq_u32 s{sW}, 0",path(0)),(f"s_cmp_eq_u32 s{sW}, 1",path(1)),(f"s_cmp_eq_u32 s{sW}, 2",path(2)),(None,path(3))])
    def wo_dma(g,L):
        e=g.e
        e(f"s_lshl_b32 s44, s68, 2\ns_add_u32 s44, s44, s{sW}\ns_mul_i32 s44, s44, 25600\ns_add_u32 s44, s44, {W_O}\ns_mul_i32 s70, s{sW}, 25600")
        def one(k):
            if k and k%4==0: e("s_add_u32 s44, s44, 4096\ns_add_u32 s70, s70, 4096")
            e("s_mov_b32 m0, s70")
            e.vmem(f"buffer_load_dwordx4 v1, {WS}, s44 offen offset:{(k%4)*1024} lds",("wod",k))
        return [(lambda k=k: one(k)) for k in range(25)]
    def w1_cursor(g,sg,ps):
        e=g.e
        if ps==0:
            e(f"""s_mul_i32 s63, s{sJ}, 7
s_cmp_eq_u32 s{sJ}, 7
s_cselect_b32 s63, 48, s63
s_lshl_b32 s24, s{sW}, 1
s_add_u32 s63, s63, s24
s_min_u32 s63, s63, 53""")
        if g.o.get("fakej"): e(f"s_lshl_b32 s24, s{sW}, 1\ns_add_u32 s24, s24, {ps}")
        else: e(f"s_add_u32 s24, s63, {ps}\ns_min_u32 s24, s24, 53")
        e(f"s_mul_i32 s24, s24, 40960\ns_add_u32 s{sg}, s24, {W_1}"); g.w.cursor(sg)
    def attention(g,L):
        e=g.e; W=g.w
        NEG="0xf149f2ca"
        S0,P0,OM,OX,VX,MK,QF=24,92,128,132,136,176,200
        e(f"s_mov_b32 s25, {NEG}\nv_lshlrev_b32 v3, 2, v240\nv_mov_b32 v216, s25")
        for d in (4,3,2,1):
            e(f"s_cmp_lt_u32 s{sC}, {d}\ns_cselect_b32 s24, s25, 0")
            for r in range(4): e(f"v_mov_b32 v{MK+8+4*(4-d)+r}, s24")
        for r in range(4):
            e(f"v_add_u32 v217, {r}, v3\nv_cmp_le_u32 vcc, v217, v241\nv_cndmask_b32 v{MK+r}, v216, 0, vcc".replace("v216, 0, vcc","v216, v219, vcc") if False else
              f"v_add_u32 v217, {r}, v3\nv_cmp_gt_u32 vcc, v217, v241\nv_cndmask_b32 v{MK+r}, 0, v216, vcc\nv_cndmask_b32 v{MK+4+r}, v216, v{MK+8+r}, vcc")
        for i in range(40): e(f"v_mov_b32 v{VX+i}, 0x3f803f80")
        for k,d in enumerate((4,3,2,1,0)):
            e(f"""s_sub_u32 s24, s{sC}, {d}
s_cmp_lt_u32 s{sC}, {d}
s_cselect_b32 s24, s{sC}, s24
s_lshl_b32 s24, s24, 3
s_add_u32 s24, s24, s{sJ}
s_lshl_b32 s25, s24, 14
s_lshl_b32 s26, s{sW}, 12
s_add_u32 s25, s25, s26
s_add_u32 s{45+k}, s25, {KBUF[L]}
s_mul_i32 s25, s24, 10240
s_add_u32 s{50+k}, s25, {VBUF[L]}""")
        e(f"s_lshl_b32 s55, s{sW}, 11\nv_add_u32 v218, s55, v1\nv_add_u32 v219, 8192, v1\nv_lshrrev_b32 v3, 2, v241\nv_cmp_eq_u32 s[56:57], s{sW}, v3")
        e(f"s_and_b32 s24, s{sW}, 1\ns_cmp_eq_u32 s24, 1\ns_cselect_b64 s[58:59], -1, 0")
        e(f"s_lshr_b32 s24, s{sW}, 1\ns_lshl_b32 s24, s24, 10\ns_and_b32 s25, s{sW}, 1\ns_lshl_b32 s25, s25, 3\ns_add_u32 s24, s24, s25\nv_add_u32 v229, s24, v238")
        g.poll(5*L+1,237)
        g.stamp(6+12*L)
        def ldK(u):
            sl=W.take((L,"k",u)); o=(u&3)*1024
            e.vmem(f"buffer_load_dwordx4 {A(4*sl,4)}, v1, {WS}, s{45+(u>>2)} offen offset:{o}",(L,"k",u))
        def ldV(pi):
            sl=W.take((L,"v",pi)); o=(pi&1)*1024
            e.vmem(f"buffer_load_dwordx4 {A(4*sl,4)}, v218, {WS}, s{50+(pi>>1)} offen offset:{o}",(L,"v",pi))
        def ldX(pi):
            o=(pi&1)*1024
            e.vmem(f"buffer_load_dwordx4 {V(VX+4*pi,4)}, v219, {WS}, s{50+(pi>>1)} offen offset:{o}",(L,"x",pi))
        e("s_barrier")
        for u in range(17): ldK(u)
        def ldXm(pis):
            e("s_mov_b64 exec, s[56:57]")
            for pi in pis: ldX(pi)
            e("s_mov_b64 exec, -1")
        late=[(lambda pi=pi: ldV(pi)) for pi in range(5)]+[lambda: ldXm(range(5))]+[(lambda pi=pi: ldV(pi)) for pi in range(5,9)]+[lambda: ldXm(range(5,10))]
        late+=[(lambda u=u: ldK(u)) for u in range(17,20)]+[lambda: ldV(9)]
        late+=g.wo_dma(L)
        g.w1_cursor(64,0)
        W.push([((L,"W1",0,k),64,k) for k in range(40)])
        g.w1_cursor(65,1)
        W.push([((L,"W1",1,k),65,k) for k in range(40)])
        def cop(i,u):
            if u==i: return V(MK+4,4)
            if u==16+i: return V(MK,4)
            d=4-(u>>2)
            return V(MK+8+4*(4-d),4) if d>0 else "0"
        def qk(i,q):
            u=i+q; e.wvm((L,"k",u))
            e(f"{MF} {V(S0+4*q,4)}, {A(4*W.slot[(L,'k',u)],4)}, {V(QF+4*i,4)}, {cop(i,u)}")
        def pv(i):
            f=[]
            for k in range(9):
                pi=(i>>1)+k
                def a(k=k,pi=pi):
                    e.wvm((L,"v",pi)); e(f"{MF} {V(OM,4)}, {A(4*W.slot[(L,'v',pi)],4)}, {V(P0+4*k,4)}, {V(OM,4) if k else '0'}")
                def b(k=k,pi=pi):
                    e.wvm((L,"x",pi)); e(f"{MF} {V(OX,4)}, {V(VX+4*pi,4)}, {V(P0+4*k,4)}, {V(OX,4) if k else '0'}")
                f+=[a,b]
            return f
        def fin(i):
            e(f"""v_mov_b32 v220, v{OX}
v_mov_b32 v221, v{OX}
v_permlane16_swap_b32 v220, v221
v_cndmask_b32 v220, v221, v220, s[58:59]
v_rcp_f32 v220, v220""")
            for r in range(8): e(f"v_mul_f32 v{OM+r}, v220, v{OM+r}")
            e(f"v_cvt_pk_bf16_f32 v222, v{OM}, v{OM+1}\nv_cvt_pk_bf16_f32 v223, v{OM+2}, v{OM+3}\nv_cvt_pk_bf16_f32 v224, v{OX}, v{OX+1}\nv_cvt_pk_bf16_f32 v225, v{OX+2}, v{OX+3}")
            e.ds(f"ds_write_b64 v229, v[222:223] offset:{OEX+2560*i}")
            e(f"v_cmp_eq_u32 vcc, s{sW}, v240\ns_mov_b64 exec, vcc")
            e.ds(f"ds_write_b64 v239, v[224:225] offset:{OEX+2560*i+2048}"); e("s_mov_b64 exec, -1")
        for q in range(17): qk(0,q)
        g.stamp("a_qk0")
        npf=g.o.get("pfa",3)
        for i in range(4):
            va=[]
            vals=[S0+k for k in range(68)]
            va.append(lambda: e(f"v_max3_f32 v226, v{vals[0]}, v{vals[1]}, v{vals[2]}"))
            va.append(lambda: e(f"v_max3_f32 v228, v{vals[3]}, v{vals[4]}, v{vals[5]}"))
            k=6
            while k<68:
                va.append(lambda k=k: e(f"v_max3_f32 v226, v226, v{vals[k]}, v{vals[k+1]}")); k+=2
                if k<68: va.append(lambda k=k: e(f"v_max3_f32 v228, v228, v{vals[k]}, v{vals[k+1]}")); k+=2
            va.append(lambda: e("v_max_f32 v226, v226, v228\nv_mov_b32 v227, v226\nv_permlane32_swap_b32 v226, v227\nv_max_f32 v226, v226, v227\nv_mov_b32 v227, v226\nv_permlane16_swap_b32 v226, v227\nv_max_f32 v226, v226, v227\nv_mov_b32 v227, v226"))
            for k in range(34): va.append(lambda k=k: e(f"v_pk_add_f32 {V(S0+2*k,2)}, {V(S0+2*k,2)}, v[226:227] neg_lo:[0,1] neg_hi:[0,1]"))
            if i>0:
                m=pv(i-1)
                vi=0
                for mm in m:
                    mm()
                    for _ in range(3):
                        if vi<len(va): va[vi](); vi+=1
                for f in va[vi:]: f()
                fin(i-1)
            else:
                for n_,f in enumerate(va):
                    f()
                    if n_%5==0 and late: late.pop(0)()
            if i%2==0: e(f"v_mov_b32 v{P0+34}, 0\nv_mov_b32 v{P0+35}, 0")
            else: e(f"v_mov_b32 v{P0}, 0\nv_mov_b32 v{P0+1}, 0")
            pend=None
            for q in range(17):
                s=S0+4*q; pp=P0+2*q+(2 if i%2 else 0)
                for r in range(4): e(f"v_exp_f32 v{s+r}, v{s+r}")
                if pend is not None: pend()
                e(f"v_cvt_pk_bf16_f32 v{pp}, v{s}, v{s+1}\nv_cvt_pk_bf16_f32 v{pp+1}, v{s+2}, v{s+3}")
                pend=(lambda q=q: qk(i+1,q)) if i<3 else None
                if late: late.pop(0)()
                elif q%g.o.get("pfa2",2)==1: W.issue(1)
            if pend is not None: pend()
            W.issue(npf)
            g.stamp(f"a_t{i}")
        while late: late.pop(0)()
        for f in pv(3): f()
        for u in range(20): W.rel((L,"k",u))
        fin(3)
        for pi in range(10): W.rel((L,"v",pi))
        g.stamp("a_fin")
        e(f"""s_mul_i32 s24, s{sW}, 2560
v_add_u32 v3, s24, v238
v_add_u32 v229, s24, v239
s_mul_i32 s24, s62, 20480
s_add_u32 s24, s24, {OB[L]}
s_lshl_b32 s25, s{sJ}, 11
s_add_u32 s25, s25, s24
s_lshr_b32 s26, s{sJ}, 1
s_lshl_b32 s26, s26, 10
s_and_b32 s27, s{sJ}, 1
s_lshl_b32 s27, s27, 9
s_add_u32 s26, s26, s27
s_add_u32 s26, s26, 16384
s_add_u32 s26, s26, s24""")
        e.wvm(("wod",24)); e.wlg0(); e("s_barrier")
        e.ds(f"ds_read_b128 v[24:27], v3 offset:{OEX}","oa"); e.ds(f"ds_read_b128 v[28:31], v3 offset:{OEX+1024}","ob"); e.ds(f"ds_read_b64 v[32:33], v229 offset:{OEX+2048}","oc")
        e.wlg("oa"); g.xst(f"buffer_store_dwordx4 v[24:27], v1, {WS}, s25 offen")
        e.wlg("ob"); g.xst(f"buffer_store_dwordx4 v[28:31], v1, {WS}, s25 offen offset:1024")
        e.wlg("oc"); g.xst(f"buffer_store_dwordx2 v[32:33], v2, {WS}, s26 offen")
        g.publish(5*L+2,pf=g.o.get("pfo",24))
    def reduce_epi(g,L,k,final,red=True,pf=0):
        e=g.e
        if red: g.reduce(pf)
        g.epi(L,k,final)
    def reduce(g,pf):
        e=g.e
        for mm in range(3):
            e(f"s_add_u32 s24, s{sW}, {1+mm}\ns_and_b32 s24, s24, 3\ns_mul_i32 s24, s24, 15360\nv_add_u32 v3, s24, v1")
            for nt in range(5): e.ds(f"ds_write_b128 v3, {V(24+20*mm+4*nt,4)} offset:{mm*5120+nt*1024}")
        e(f"s_mul_i32 s24, s{sW}, 15360\nv_add_u32 v3, s24, v1")
        e.wlg0(); e("s_barrier")
        for mm in range(3):
            for nt in range(5): e.ds(f"ds_read_b128 {V(24+20*mm+4*nt,4)}, v3 offset:{mm*5120+nt*1024}",("r",mm,nt))
        for mm in range(3):
            for nt in range(5):
                e.wlg(("r",mm,nt))
                for h in range(2): e(f"v_pk_add_f32 {V(R0+4*nt+2*h,2)}, {V(R0+4*nt+2*h,2)}, {V(24+20*mm+4*nt+2*h,2)}")
        e.lg.clear()
    def epi(g,L,k,final):
        e=g.e
        for i in range(10): e(f"v_cvt_pk_bf16_f32 v{24+i}, v{R0+2*i}, v{R0+2*i+1}")
        if final:
            e(f"""s_lshl_b32 s24, s62, 4
v_add_u32 v3, s24, v241
v_mul_u32_u24 v3, 1280, v3
v_lshlrev_b32 v34, 3, v240
v_add_u32 v3, v3, v34
s_mul_i32 s24, s{sJ}, 160""")
            for nt in range(5): e.vmem(f"buffer_store_dwordx2 {V(24+2*nt,2)}, v3, {OUT}, s24 offen offset:{32*nt}")
            return
        e(f"""s_mul_i32 s24, s62, 20480
s_add_u32 s24, s24, {XF[k]}
s_lshl_b32 s25, s{sJ}, 11
s_add_u32 s25, s25, s24
s_lshr_b32 s26, s{sJ}, 1
s_lshl_b32 s26, s26, 10
s_and_b32 s27, s{sJ}, 1
s_lshl_b32 s27, s27, 9
s_add_u32 s26, s26, s27
s_add_u32 s26, s26, 16384
s_add_u32 s26, s26, s24""")
        g.xst(f"buffer_store_dwordx4 v[24:27], v1, {WS}, s25 offen")
        g.xst(f"buffer_store_dwordx4 v[28:31], v1, {WS}, s25 offen offset:1024")
        g.xst(f"buffer_store_dwordx2 v[32:33], v2, {WS}, s26 offen")
        e(f"v_pk_mul_f32 v[36:37], {V(R0,2)}, {V(R0,2)}\nv_pk_add_f32 v[34:35], {V(R0,2)}, {V(R0+2,2)}\nv_pk_fma_f32 v[36:37], {V(R0+2,2)}, {V(R0+2,2)}, v[36:37]")
        for i in range(2,10): e(f"v_pk_add_f32 v[34:35], v[34:35], {V(R0+2*i,2)}\nv_pk_fma_f32 v[36:37], {V(R0+2*i,2)}, {V(R0+2*i,2)}, v[36:37]")
        e("""v_add_f32 v34, v34, v35
v_add_f32 v35, v36, v37
v_mov_b32 v36, v34
v_mov_b32 v37, v35
v_permlane32_swap_b32 v34, v36
v_permlane32_swap_b32 v35, v37
v_add_f32 v34, v34, v36
v_add_f32 v35, v35, v37
v_mov_b32 v36, v34
v_mov_b32 v37, v35
v_permlane16_swap_b32 v34, v36
v_permlane16_swap_b32 v35, v37
v_add_f32 v34, v34, v36
v_add_f32 v35, v35, v37""")
        e(f"s_lshl_b32 s24, s60, 9\ns_lshl_b32 s25, s{sW}, 7\ns_add_u32 s24, s24, s25\ns_add_u32 s24, s24, {ST[k]}\ns_mov_b64 exec, 0xffff")
        g.xst(f"buffer_store_dwordx2 v[34:35], v2, {WS}, s24 offen"); e("s_mov_b64 exec, -1")
    def accreg(g,mm,nt): return V(24+20*mm+4*nt,4) if mm<3 else V(R0+4*nt,4)
    def wo(g,L):
        e=g.e; W=g.w
        e(f"s_mul_i32 s45, s62, 20480\ns_add_u32 s45, s45, {OB[L]}\ns_add_u32 s46, s45, 16384")
        g.poll(5*L+2,236)
        g.stamp(8+12*L)
        OF=lambda p: 84+4*p
        for p in range(16):
            if p and p%4==0: e("s_add_u32 s45, s45, 4096")
            e.vmem(f"buffer_load_dwordx4 {V(OF(p),4)}, v1, {WS}, s45 offen offset:{1024*(p%4)}",("o",p))
        for x in range(4):
            e.vmem(f"buffer_load_dwordx2 {V(OF(16+x),2)}, v2, {WS}, s46 offen offset:{1024*x}")
            e.vmem(f"buffer_load_dwordx2 {V(OF(16+x)+2,2)}, v2, {WS}, s46 offen offset:{1024*x+512}",("o",16+x))
        seq=[]
        for p in range(20):
            wv,st=(p>>2,p&3) if p<16 else (p-16,4)
            for nt in range(5): seq.append((p,nt,wv*25600+(st*5+nt)*1024))
        NR=8
        def rd(i):
            p,nt,ad=seq[i]; b,o=("v1",ad) if ad<61440 else ("v238",ad-61440)
            e.ds(f"ds_read_b128 {V(24+4*(i%NR),4)}, {b} offset:{o}",("wl",i))
        for i in range(NR-1): rd(i)
        for i,(p,nt,ad) in enumerate(seq):
            if i+NR-1<len(seq): rd(i+NR-1)
            e.wvm(("o",p)); e.wlg(("wl",i)); d=V(R0+4*nt,4)
            e(f"{MF} {d}, {V(24+4*(i%NR),4)}, {V(OF(p),4)}, {d}")
            if g.o.get("pfw",0) and i%g.o.get("pfw",0)==0: W.issue(1)
        g.stamp("wo_mm")
        g.reduce_epi(L,2*L+1,False,red=False)
        g.stamp("wo_red")
        g.publish(5*L+3,pf=g.o.get("pfx",8))
    def push_w2(g,L,n0,n1,fixed):
        it=[]
        for k in range(n0,n1):
            t=(L,"W2",k); it.append((t,66,k))
            if t in g.maps: g.w.fixed[t]=g.maps[t]
        g.w.push(it)
    def ffn1(g,L):
        e=g.e
        g.stamp("wo_pub")
        g.poll(5*L+3,236)
        g.stamp(9+12*L)
        e(f"s_mul_i32 s24, s{sW}, 14\ns_cmp_eq_u32 s{sW}, 3\ns_cselect_b32 s24, 41, s24\ns_mov_b32 s67, s24\ns_mul_i32 s25, s68, 54\ns_add_u32 s24, s24, s25\ns_mul_i32 s24, s24, 5120\ns_add_u32 s66, s24, {W_2}")
        g.w.cursor(66)
        NW2=g.NW2
        aH=(56,72); cS=(176,180); bB=(184,188)
        def ld_cb(ps):
            e(f"s_add_u32 s24, s63, {ps}\ns_min_u32 s24, s24, 53\ns_lshl_b32 s25, s24, 6\ns_lshl_b32 s24, s24, 7\ns_add_u32 s24, s24, {CS_1}\nv_lshlrev_b32 v3, 4, v240\nv_lshlrev_b32 v228, 3, v240")
            for t in range(2):
                e.vmem(f"buffer_load_dwordx4 {V(cS[t]+16*ps,4)}, v3, {WS}, s24 offen offset:{64*t}",("cb",ps))
                e.vmem(f"buffer_load_dwordx2 {V(bB[t]+16*ps,2)}, v228, {B1}, s25 offen offset:{32*t}",("cb",ps))
        def one_pass(ps,pf):
            W=g.w
            e.wvm(("cb",ps))
            for t in range(2):
                b=bB[t]+16*ps
                e(f"v_and_b32 v{b+3}, 0xffff0000, v{b+1}\nv_lshlrev_b32 v{b+2}, 16, v{b+1}\nv_and_b32 v{b+1}, 0xffff0000, v{b}\nv_lshlrev_b32 v{b}, 16, v{b}")
            g.gemm_x([(aH[t],False,(lambda p,t=t:(L,"W1",ps,2*p+t))) for t in range(2)],pf,chunks=(ps==0))
            if ps==0: g.load_stats(False)
            e(f"s_add_u32 s24, s63, {ps}\ns_lshl_b32 s24, s24, 10\ns_mul_i32 s25, s61, 55296\ns_add_u32 s24, s24, s25\ns_add_u32 s24, s24, {HB[L]}")
            for m in range(4):
                for t in range(2):
                    a=aH[t]+4*m; b=bB[t]+16*ps
                    g.norm(aH[t],m,cS[t]+16*ps,False,mul=False)
                    pr,o=g.bc(140+m)
                    for h in range(2): e(f"v_pk_fma_f32 {V(a+2*h,2)}, {V(a+2*h,2)}, {pr}, {V(b+2*h,2)} op_sel:[0,{o},0] op_sel_hi:[1,{o},1]")
                    for r in range(4): e(f"v_max_f32 v{a+r}, 0, v{a+r}")
                    for h in range(2): e(f"v_pk_mul_f32 {V(a+2*h,2)}, {V(a+2*h,2)}, {V(a+2*h,2)}")
                    T=24+4*m+2*t
                    e(f"v_cvt_pk_bf16_f32 v{T}, v{a}, v{a+1}\nv_cvt_pk_bf16_f32 v{T+1}, v{a+2}, v{a+3}")
                g.xst(f"buffer_store_dwordx4 {V(24+4*m,4)}, v1, {WS}, s24 offen")
                if m<3: e("s_add_u32 s24, s24, 55296")
        ld_cb(0); ld_cb(1)
        g.stage_x(XF[2*L+1],ST[2*L+1])
        g.stamp(10+12*L)
        def path(np_):
            def fn():
                W=g.w

                for ps in range(np_,2):
                    W.q=[t for t in W.q if t[0][:3]!=(L,"W1",ps)]
                    for k in range(40):
                        if (L,"W1",ps,k) in W.slot: W.rel((L,"W1",ps,k))
                g.push_w2(L,0,NW2,16)
                if np_==0:
                    for k in range(4): g.chunk(k)
                for ps in range(np_):
                    one_pass(ps,lambda p,ps=ps:(g.o.get("pf1a",3) if ps==0 else (g.o.get("pf1b",3) if p<g.o.get("pf1c",14) else 0))); g.stamp(f"f1_p{ps}")
                g.f1_tail(L,NW2)
            return fn
        g.fork([(f"s_cmp_lt_u32 s{sW}, 3",path(2)),(f"s_cmp_lt_u32 s{sJ}, 6",path(1)),(None,path(0))])
        g.stamp("f1_pub")
    def f1_tail(g,L,NW2):
        W=g.w
        g.publish(5*L+4,pf=len(W.q))
        while W.q: assert W.issue(1)==1
        for t_,sl in W.slot.items(): g.maps.setdefault(t_,sl)
    def ffn2(g,L):
        e=g.e; W=g.w; last=(L==1)
        for mm in range(4):
            e(f"s_add_u32 s24, s{sW}, {1+mm}\ns_and_b32 s24, s24, 3\ns_add_u32 s24, s24, s61\ns_mul_i32 s24, s24, 54\ns_add_u32 s24, s24, s67\ns_lshl_b32 s24, s24, 10\ns_add_u32 s{45+mm}, s24, {HB[L]}")
            W.cursor(45+mm)
        e(f"s_mul_i32 s24, s{sJ}, 160\nv_lshlrev_b32 v3, 3, v240")
        for nt in range(5): e.vmem(f"buffer_load_dwordx2 {V(84+2*nt,2)}, v3, {B2}, s24 offen offset:{32*nt}","b2")
        e.wvm("b2")
        for i in range(10):
            e(f"v_lshlrev_b32 v94, 16, v{84+i}\nv_and_b32 v95, 0xffff0000, v{84+i}\nv_pk_add_f32 {V(R0+2*i,2)}, {V(R0+2*i,2)}, v[94:95]")
        g.poll(5*L+4,236)
        g.stamp(11+12*L)
        it=[]
        for st in range(14):
            for mm in range(4): it.append(((L,"h",st,mm),45+mm,st,""))
            for nt in range(5):
                k=st*5+nt
                if k>=g.NW2: it.append(((L,"W2",k),66,k))
        W.push(it)
        W.issue(g.o.get("pfh",12))
        for st in range(14):
            if st==13:
                for mm in range(4): W.use((L,"h",st,mm))
                for nt in range(5): W.use((L,"W2",st*5+nt))
                sk=e.lab("SK"); e(f"s_cmp_ge_u32 s{sW}, 2\ns_cbranch_scc1 {sk}")
            for nt in range(5):
                a=W.use((L,"W2",st*5+nt))
                for mm in range(4):
                    b=W.use((L,"h",st,mm)); d=g.accreg(mm,nt)
                    e(f"{MF} {d}, {a}, {b}, {d if (st or mm==3) else '0'}")
                    if mm==1 and st<13: W.issue(1)
                W.rel((L,"W2",st*5+nt))
                if st<13: W.issue(1)
            for mm in range(4): W.rel((L,"h",st,mm))
            if st==13: e(f"s_nop 7\n{sk}:")
        g.stamp("f2_mm")
        if not last:
            g.qkv_cursors(); g.push_kv(L+1)
        W.issue(g.o.get("pf2",16))
        g.reduce_epi(L,2,last)
        g.stamp("f2_red")
        if not last: g.publish(5*L+5,pf=g.o.get("pf3",16))
def gen_main(name,opts):
    g=G(opts); e=g.e; upto=opts.get("upto",99)
    g.prologue(name)
    g.stamp(0)
    g.qkv_cursors(); g.push_kv(0)
    n=0
    for L in range(2):
        for ph,st in ((g.qkv,5),(g.attention,7),(g.wo,None),(g.ffn1,None),(g.ffn2,12)):
            if n>=upto: break
            g.curL=L; ph(L); n+=1
            if st is not None: g.stamp(st+12*L)
    e("s_waitcnt vmcnt(0)\nM_END:\ns_endpgm")
    if opts.get("fine") is not None: print("STAMPS",g.names)
    return fix_hazards(e.L)
```

```python
import sys
from emit import *
from lay import *
from gen_prep import gen_prep, desc, PREP
import gen_main
MAIN="interleave_layers__sliding_block__dense_activation_squared_relu__prompt_kernel"
def build(opts=None):
    opts=opts or {}
    hdr=f"""; generated by dev/gen.py (hand-written generator)
; @launch kernel={PREP} grid=(504,1,1) block=(256,1,1) lds=24576
; @launch kernel={MAIN} grid=(256,1,1) block=(256,1,1) lds=118784
.amdgcn_target "amdgcn-amd-amdhsa--gfx950"
.text
"""
    P=gen_prep()
    if opts.get('noprep'): P=[l.replace('s_cmp_ge_u32 s2, 504','s_cmp_ge_u32 s2, 0') for l in P]
    L=P+gen_main.gen_main(MAIN,opts)
    body="\n".join(L)+"\n"
    ro='.section .rodata,"a"\n.p2align 6\n'+desc(PREP,64,64)+".p2align 6\n"+desc(MAIN,512,256)
    return hdr+body+ro
if __name__=="__main__":
    s=build()
    open("interleave_layers__sliding_block__dense_activation_squared_relu__prompt.s","w").write(s)
    print(len(s),"bytes",s.count("\n"),"lines")
```

```python
from emit import *
from lay import *
import copy
MF="v_mfma_f32_16x16x32_bf16"
WS="s[4:7]"; OUT="s[8:11]"; B1="s[12:15]"; B2="s[16:19]"
sC,sJ,sW=20,21,22
sFL=23
sT=[24,25,26,27,28,29,30,31]
R0=4
LDS_ST=102400; LDS_QX=103424; LDS_RED=0; OEX=107520-61440
class WQ:
    def __init__(s,e): s.e=e; s.free=list(range(64)); s.q=[]; s.slot={}; s.cur={}; s.fixed={}
    def copy(s,e):
        c=WQ(e); c.free=list(s.free); c.q=list(s.q); c.slot=dict(s.slot); c.cur=dict(s.cur); c.fixed=dict(s.fixed); return c
    def push(s,items): s.q+=items
    def cursor(s,sg): s.cur[sg]=0
    def issue(s,n=1,mod=""):
        k=0
        while k<n and s.q and s.free:
            it=s.q[0]; tag,sg,idx=it[:3]; m2=it[3] if len(it)>3 else mod
            if tag in s.fixed:
                if s.fixed[tag] not in s.free: break
                sl=s.fixed[tag]; s.free.remove(sl)
            else:
                res=set(s.fixed[t[0]] for t in s.q if t[0] in s.fixed)
                cand=[x for x in s.free if x not in res] or s.free
                sl=cand[0]; s.free.remove(sl)
            s.q.pop(0); s.slot[tag]=sl
            while s.cur[sg]<idx//4: s.e(f"s_add_u32 s{sg}, s{sg}, 4096"); s.cur[sg]+=1
            assert s.cur[sg]==idx//4,(tag,sg,idx,s.cur[sg])
            o=(idx%4)*1024
            s.e.vmem(f"buffer_load_dwordx4 {A(4*sl,4)}, v1, {WS}, s{sg} offen"+(f" offset:{o}" if o else "")+m2,tag); k+=1
        return k
    def ensure(s,tag):
        while tag not in s.slot:
            assert s.q and s.free,("cannot ensure",tag,len(s.q),len(s.free))
            assert s.issue(1)==1,("stuck",tag,s.q[0])
    def use(s,tag):
        s.ensure(tag); s.e.wvm(tag); return A(4*s.slot[tag],4)
    def rel(s,tag): s.free.append(s.slot.pop(tag))
    def take(s,tag): sl=s.free.pop(0); s.slot[tag]=sl; return sl
def interleave(e,mains,fill,per=1,lead=0):
    fill=list(fill); n=len(mains)
    for i,m in enumerate(mains):
        m()
        rem=n-i
        k=-(-len(fill)//rem) if rem>0 else len(fill)
        for _ in range(min(k,len(fill))): fill.pop(0)()
    for f in fill: f()
class G:
    def __init__(g,opts):
        opts=dict(opts)
        if opts.get('plain'): opts['xmode']='plain'
        g.LS='' if opts.get('nols') else ' sc1'
        g.o=opts; g.e=E(); g.w=WQ(g.e); g.nst=0; g.maps={}; g.NW2=opts.get('nw2',48); g.SK='' if opts.get('plainkv') else ' sc1';  g.names=[]; g.curL=0
    def stamp(g,i):
        if not g.o.get("prof"): return
        if g.o.get("fine") is not None:
            if isinstance(i,int): i=f"s{i}"
            if g.curL!=g.o["fine"] and i!="s0": return
            if i not in g.names: g.names.append(i)
            i=g.names.index(i)
            assert i<32
        elif not isinstance(i,int): return
        e=g.e
        e("s_memtime s[98:99]"); e.wlg0()
        e(f"v_mov_b32 v255, s98\ns_lshl_b32 s98, s2, 2\ns_add_u32 s98, s98, s{sW}\ns_lshl_b32 s98, s98, 7\ns_add_u32 s98, s98, {(60<<20)+4*i}")
        e("s_mov_b64 exec, 1"); e.vmem(f"buffer_store_dword v255, off, s[100:103], s98".replace("s[100:103]","s[92:95]")); e("s_mov_b64 exec, -1")
    def xst(g,txt,tag=None):
        e=g.e; m=g.o.get('xmode','auto')
        if m=='sc1': return e.vmem(txt+" sc1")
        if m=='plain': return e.vmem(txt)
        a=e.lab("XS"); b=e.lab("XE")
        e(f"s_cmp_eq_u32 s72, 0\ns_cbranch_scc1 {a}")
        e.vmem(txt)
        e(f"s_branch {b}\n{a}:\n{txt} sc1\n{b}:")
    def cpf(g,va,vd,tag):
        e=g.e; l=e.lab("LPC")
        e(f"""s_getpc_b64 s[34:35]
{l}:
s_lshr_b32 s36, s2, 3
s_lshl_b32 s36, s36, 2
s_add_u32 s36, s36, s{sW}
s_lshl_b32 s36, s36, 10
s_min_u32 s36, s36, M_END-{l}-1024
s_add_u32 s34, s34, s36
s_addc_u32 s35, s35, 0
v_mov_b32 v{va+1}, s35
v_add_co_u32 v{va}, vcc, s34, v1
v_addc_co_u32 v{va+1}, vcc, 0, v{va+1}, vcc""")
        e.vmem(f"global_load_dwordx4 {V(vd,4)}, {V(va,2)}, off",tag)
    def publish(g,seq,pf=0):
        e=g.e; e.vm.p["__st"]=0
        if pf: g.w.issue(pf)
        e.wvm("__st")
        e(f"v_mov_b32 v3, {seq}\ns_mov_b64 exec, 1")
        t=f"buffer_store_dword v3, off, {WS}, s{sFL}"
        if seq%5==1: e.vmem(t+" sc1")
        else: g.xst(t)
        e("s_mov_b64 exec, -1")
    def poll(g,seq,vaddr):
        e=g.e; l=e.lab("PL"); d=e.lab("PD")
        if seq==1 and g.o.get('xmode','auto')=='auto':
            e(f"s_lshl_b32 s25, s{sC}, 5\ns_add_u32 s25, s25, {FLAGS+4096}\nv_and_b32 v217, 7, v0\nv_lshlrev_b32 v217, 2, v217\nv_add_u32 v217, s25, v217")
            e(f"s_mov_b32 s24, {g.o.get('spin',30000)}\n{l}:")
            e(f"buffer_load_dword v3, v{vaddr}, {WS}, 0 offen sc1\nbuffer_load_dword v216, v217, {WS}, 0 offen sc1\ns_waitcnt vmcnt(0)\nv_cmp_eq_u32 vcc, 0, v216\ns_nop 0\nv_cndmask_b32 v3, v3, v216, vcc\nv_cmp_gt_u32 vcc, {seq}, v3\ns_sub_u32 s24, s24, 1\ns_cbranch_scc1 {d}\ns_cbranch_vccnz {l}\n{d}:")
            e(f"v_cmp_eq_u32 vcc, s73, v216\ns_nop 4\ns_cmp_eq_u64 vcc, -1\ns_cselect_b32 s72, 1, 0")
            if g.o.get('dbgsame'): e(f"v_mov_b32 v216, s72\ns_lshl_b32 s25, s2, 2\ns_add_u32 s25, s25, {61<<20}\ns_mov_b64 exec, 1\nbuffer_store_dword v216, off, s[92:95], s25\ns_mov_b64 exec, -1")
            e.vm.clear(); return
        e(f"s_mov_b32 s24, {g.o.get('spin',30000)}\n{l}:")
        e(f"buffer_load_dword v3, v{vaddr}, {WS}, 0 offen sc1\ns_waitcnt vmcnt(0)\nv_cmp_gt_u32 vcc, {seq}, v3\ns_sub_u32 s24, s24, 1\ns_cbranch_scc1 {d}\ns_cbranch_vccnz {l}\n{d}:")
        e.vm.clear()
    def fork(g,paths):
        e=g.e; end=e.lab("FE"); vm0,lg0,w0=e.vm,e.lg,g.w; res=[]; xn0=getattr(g,'xn',0)
        labs=[e.lab("FK") for _ in paths]
        for (c,_),l in zip(paths[:-1],labs): e(c+f"\ns_cbranch_scc1 {l}")
        e(f"s_branch {labs[-1]}")
        for (c,fn),l in zip(paths,labs):
            e.vm=vm0.copy(); e.lg=lg0.copy(); g.w=w0.copy(e); g.xn=xn0
            e(f"{l}:"); fn(); e(f"s_nop 7\ns_branch {end}"); res.append((e.vm,e.lg,g.w))
        e(f"{end}:")
        e.vm,e.lg,g.w=res[0]
        for vm,lg,w in res[1:]:
            e.vm.merge(vm); e.lg.merge(lg)
            assert w.slot==g.w.slot and w.q==g.w.q,(w.slot,g.w.slot,len(w.q),len(g.w.q))
            for k_ in list(g.w.cur):
                if w.cur.get(k_)!=g.w.cur[k_]: del g.w.cur[k_]
        g.w.free=sorted(g.w.free)
    def prologue(g,name):
        e=g.e
        e(f""".globl {name}
.p2align 8
.type {name},@function
{name}:
s_cmp_ge_u32 s2, 256
s_cbranch_scc1 M_END
s_load_dwordx2 s[24:25], s[0:1], 40
s_load_dwordx2 s[26:27], s[0:1], 56
s_load_dwordx2 s[28:29], s[0:1], 64
s_load_dwordx2 s[30:31], s[0:1], 80
v_lshrrev_b32 v1, 6, v0
v_and_b32 v0, 63, v0
s_nop 0
v_readfirstlane_b32 s{sW}, v1
v_lshlrev_b32 v1, 4, v0
v_lshlrev_b32 v2, 3, v0""")
        if g.o.get("xmap"):
            e(f"s_lshr_b32 s{sC}, s2, 3\ns_and_b32 s{sJ}, s2, 7")
        else:
            e(f"s_and_b32 s{sC}, s2, 7\ns_lshl_b32 s{sC}, s{sC}, 2\ns_lshr_b32 s{sJ}, s2, 6\ns_add_u32 s{sC}, s{sC}, s{sJ}\ns_lshr_b32 s{sJ}, s2, 3\ns_and_b32 s{sJ}, s{sJ}, 7")
        e("s_waitcnt lgkmcnt(0)")
        for d,p,sz in ((4,30,WS_USED),(8,28,2048*1280),(12,24,3456),(16,26,1280),(92,30,64<<20)):
            if d==92 and not g.o.get("prof"): continue
            e(f"s_mov_b32 s{d}, s{p}\ns_mov_b32 s{d+1}, s{p+1}\ns_mov_b32 s{d+2}, {sz}\ns_mov_b32 s{d+3}, 0x00020000")
        e(f"""s_mov_b32 s72, 0
s_getreg_b32 s73, hwreg(HW_REG_XCC_ID, 0, 4)
s_add_u32 s73, s73, 1
s_lshl_b32 s24, s{sC}, 5
s_lshl_b32 s25, s{sJ}, 2
s_add_u32 s24, s24, s25
s_add_u32 s24, s24, {FLAGS+4096}
v_mov_b32 v3, s73
s_mov_b64 exec, 1""")
        e.vmem(f"buffer_store_dword v3, off, {WS}, s24 sc1"); e("s_mov_b64 exec, -1")
        e(f"""s_lshl_b32 s24, s{sC}, 7
s_add_u32 s24, s24, {FLAGS}
s_lshl_b32 s25, s{sJ}, 4
s_lshl_b32 s26, s{sW}, 2
s_add_u32 s25, s25, s26
s_add_u32 s{sFL}, s24, s25
v_and_b32 v236, 31, v0
v_lshlrev_b32 v236, 2, v236
v_add_u32 v236, s24, v236
v_lshrrev_b32 v3, 2, v0
v_cmp_gt_u32 vcc, 20, v0
v_cndmask_b32 v3, 0, v3, vcc
v_sub_u32 v237, s{sC}, v3
v_cmp_gt_i32 vcc, 0, v237
v_mov_b32 v3, s{sC}
v_cndmask_b32 v237, v237, v3, vcc
v_lshlrev_b32 v237, 7, v237
v_and_b32 v3, 3, v0
v_lshlrev_b32 v3, 2, v3
v_add_u32 v237, v237, v3
s_lshl_b32 s25, s{sJ}, 4
s_add_u32 s25, s25, {FLAGS}
v_add_u32 v237, s25, v237
v_add_u32 v238, 61440, v1
v_add_u32 v239, 61440, v2
v_lshrrev_b32 v240, 4, v0
v_and_b32 v241, 15, v0
s_mul_i32 s60, s{sC}, 8
s_add_u32 s60, s60, s{sJ}
s_mov_b32 s68, {"0" if g.o.get("fakej") else "s21"}
s_lshl_b32 s61, s{sC}, 2
s_add_u32 s62, s61, s{sW}""")
        e(f"""s_mul_i32 s24, s62, 20480
s_add_u32 s24, s24, {XF[0]}
s_lshl_b32 s25, s{sJ}, 11
s_add_u32 s25, s25, s24
s_lshr_b32 s26, s{sJ}, 1
s_lshl_b32 s26, s26, 10
s_and_b32 s27, s{sJ}, 1
s_lshl_b32 s27, s27, 9
s_add_u32 s26, s26, s27
s_add_u32 s26, s26, 16384
s_add_u32 s26, s26, s24""")
        if g.o.get("cpf",1): g.cpf(36,40,"cpf0")
        if g.o.get("tio",1):
            e("v_lshlrev_b32 v44, 19, v0\ns_mov_b64 exec, 31"); e.vmem(f"buffer_load_dword v45, v44, {OUT}, 0 offen")
            e("s_mov_b64 exec, 1"); e.vmem(f"buffer_load_dword v45, off, {B1}, 0"); e.vmem(f"buffer_load_dword v45, off, {B2}, 0"); e("s_mov_b64 exec, -1")
        e.vmem(f"buffer_load_dwordx4 v[24:27], v1, {WS}, s25 offen","r0")
        e.vmem(f"buffer_load_dwordx4 v[28:31], v1, {WS}, s25 offen offset:1024","r1")
        e.vmem(f"buffer_load_dwordx2 v[32:33], v2, {WS}, s26 offen","r2")
        if g.o.get("pt",0)&8: g.pt_kv(0)
        e.wvm("r2")
        for i in range(10):
            e(f"v_lshlrev_b32 v{R0+2*i}, 16, v{24+i}\nv_and_b32 v{R0+2*i+1}, 0xffff0000, v{24+i}")
    def qkv_cursors(g):
        e=g.e
        e(f"""s_mul_i32 s24, s68, {15*20480}
s_add_u32 s24, s24, {W_QKV}
s_mul_i32 s25, s{sW}, 20480
s_add_u32 s40, s24, s25
s_add_u32 s41, s40, {4*20480}
s_add_u32 s42, s40, {8*20480}
s_add_u32 s43, s40, {12*20480}""")
        for s in (40,41,42,43): g.w.cursor(s)
    def push_kv(g,L):
        it=[]
        for p in range(20): it+=[((L,"K",p),40,p),((L,"V",p),41,p)]
        g.w.push(it)
    def stage_x(g,xb,stb,extra=None):
        e=g.e
        e(f"s_lshl_b32 s26, s60, 9\ns_and_b32 s26, s26, 0xfffff000\ns_lshl_b32 s27, s{sW}, 7\ns_add_u32 s26, s26, s27\ns_add_u32 s26, s26, {stb}")
        e("v_lshrrev_b32 v24, 3, v0\nv_lshlrev_b32 v24, 9, v24\nv_and_b32 v25, 7, v0\nv_lshlrev_b32 v25, 4, v25\nv_add_u32 v24, v24, v25")
        e.vmem(f"buffer_load_dwordx4 v[28:31], v24, {WS}, s26 offen","stat")
        e(f"s_mul_i32 s69, s62, 20480\ns_add_u32 s69, s69, {xb}\ns_mul_i32 s70, s{sW}, 20480")
        g.xn=0
        for p in range(g.o.get("xup",10)):
            g.xdma()
            if extra: extra(p)
        e.wvm("stat")
        for r in range(4): e(f"v_mov_b32 v{32+r}, v{28+r}")
        for r in range(4): e(f"v_permlane32_swap_b32 v{28+r}, v{32+r}")
        for r in range(4): e(f"v_add_f32 v{28+r}, v{28+r}, v{32+r}")
        for r in range(4): e(f"v_mov_b32 v{32+r}, v{28+r}")
        for r in range(4): e(f"v_permlane16_swap_b32 v{28+r}, v{32+r}")
        for r in range(4): e(f"v_add_f32 v{28+r}, v{28+r}, v{32+r}")
        for r in range(4): e(f"v_add_f32_dpp v{28+r}, v{28+r}, v{28+r} row_ror:8 row_mask:0xf bank_mask:0xf")
        e("s_mov_b32 s26, 0xbacccccd\ns_mov_b32 s27, 0x3acccccd")
        e(f"""v_mul_f32 v32, s26, v28
v_mul_f32 v33, s26, v30
v_mul_f32 v34, s27, v29
v_mul_f32 v35, s27, v31
v_fma_f32 v34, -v32, v32, v34
v_fma_f32 v35, -v33, v33, v35
v_max_f32 v34, 0, v34
v_max_f32 v35, 0, v35
v_add_f32 v34, 0x3727c5ac, v34
v_add_f32 v35, 0x3727c5ac, v35
v_rsq_f32 v34, v34
v_rsq_f32 v35, v35
v_and_b32 v24, 7, v0
v_lshlrev_b32 v24, 3, v24
s_lshl_b32 s26, s{sW}, 6
s_add_u32 s26, s26, {LDS_ST}
v_add_u32 v24, s26, v24
s_mov_b64 exec, 0xff""")
        e.ds("ds_write_b64 v24, v[32:33]"); e.ds("ds_write_b64 v24, v[34:35] offset:256"); e("s_mov_b64 exec, -1")
    def xdma(g):
        e=g.e; p=g.xn
        if p>=20: return
        g.xn+=1
        if p and p%4==0: e("s_add_u32 s69, s69, 4096\ns_add_u32 s70, s70, 4096")
        e("s_mov_b32 m0, s70")
        e.vmem(f"buffer_load_dwordx4 v1, {WS}, s69 offen offset:{(p%4)*1024}{g.LS} lds",("xd",p))
    def chunk(g,k):
        e=g.e
        while g.xn<5*k+5: g.xdma()
        e.wvm(("xd",5*k+4))
        if k==0: e.wlg0()
        e("s_barrier")
    def xread(g,p,m,dst):
        e=g.e
        if p<16:
            b,o=("v1",m*20480+p*1024) if m<3 else ("v238",p*1024)
            e.ds(f"ds_read_b128 {V(dst,4)}, {b} offset:{o}",("x",p,m))
        else:
            b,o=("v2",m*20480+p*1024) if m<3 else ("v239",p*1024)
            e.ds(f"ds_read_b64 {V(dst,2)}, {b} offset:{o}")
            e.ds(f"ds_read_b64 {V(dst+2,2)}, {b} offset:{o+512}",("x",p,m))
    def gemm_x(g,tiles,pf,chunks=False):
        e=g.e
        XB=lambda p,m: 24+16*(p&1)+4*m
        if chunks: g.chunk(0)
        for m in range(4): g.xread(0,m,XB(0,m))
        for p in range(20):
            if chunks and p in (4,9,14): g.chunk((p+1)//5)
            mains=[]
            for (acc,sw,tf) in tiles:
                for m in range(4):
                    def mm(acc=acc,sw=sw,tf=tf,m=m,p=p):
                        a=g.w.use(tf(p)); e.wlg(("x",p,m)); x=V(XB(p,m),4); d=V(acc+4*m,4); c=d if p else "0"
                        e(f"{MF} {d}, {x}, {a}, {c}" if sw else f"{MF} {d}, {a}, {x}, {c}")
                        if m==3: g.w.rel(tf(p))
                    mains.append(mm)
            fl=[]
            if p<19:
                for m in range(4): fl.append(lambda m=m,p=p: g.xread(p+1,m,XB(p+1,m)))
            if chunks and p%g.o.get("xev",1)==0: fl.append(g.xdma)
            for _ in range(pf(p)): fl.append(lambda: g.w.issue(1))
            interleave(e,mains,fl)
    def load_stats(g,row):
        e=g.e
        e(f"v_lshlrev_b32 v3, 2, v241\nv_add_u32 v3, {LDS_ST}, v3")
        for m in range(4):
            e.ds(f"ds_read_b32 v{136+m}, v3 offset:{64*m}","s"); e.ds(f"ds_read_b32 v{140+m}, v3 offset:{256+64*m}","s")
        if row:
            e(f"v_lshlrev_b32 v3, 4, v240\nv_add_u32 v3, {LDS_ST}, v3")
            for m in range(4):
                e.ds(f"ds_read_b128 {V(144+4*m,4)}, v3 offset:{64*m}","s"); e.ds(f"ds_read_b128 {V(160+4*m,4)}, v3 offset:{256+64*m}","s")
        e.wlg0()
    def bc(g,r):
        return (V(r&~1,2), r&1)
    def norm(g,acc,m,cs,sw,rs=None,mul=True):
        e=g.e; a=acc+4*m
        for h in range(2):
            d=V(a+2*h,2)
            if sw:
                pr,o=g.bc(cs); e(f"v_pk_fma_f32 {d}, {V(144+4*m+2*h,2)}, {pr}, {d} op_sel:[0,{o},0] op_sel_hi:[1,{o},1]")
            else:
                pr,o=g.bc(136+m); e(f"v_pk_fma_f32 {d}, {V(cs+2*h,2)}, {pr}, {d} op_sel:[0,{o},0] op_sel_hi:[1,{o},1]")
        if not mul: return
        for h in range(2):
            d=V(a+2*h,2)
            if sw: e(f"v_pk_mul_f32 {d}, {d}, {V(160+4*m+2*h,2)}")
            else:
                pr,o=g.bc((rs or 140)+m); e(f"v_pk_mul_f32 {d}, {d}, {pr} op_sel:[0,{o}] op_sel_hi:[1,{o}]")
    def norm_cvt(g,acc,m,cs,dst,sw,rs=None):
        g.norm(acc,m,cs,sw,rs); a=acc+4*m
        g.e(f"v_cvt_pk_bf16_f32 v{dst}, v{a}, v{a+1}\nv_cvt_pk_bf16_f32 v{dst+1}, v{a+2}, v{a+3}")
    def qkv(g,L):
        e=g.e; xb=XF[2*L]; stb=ST[2*L]
        aK,aV,aX,aQ,aQX=56,72,88,104,120
        cK,cQ,cX,cV=176,180,184,188
        def path(wv):
            def fn():
                W=g.w
                hasx=wv<3;
                e(f"s_mul_i32 s24, s{sJ}, 960\ns_lshl_b32 s25, s{sW}, 6\ns_add_u32 s24, s24, s25\ns_add_u32 s24, s24, {CS_QKV}\nv_lshlrev_b32 v3, 4, v240\nv_lshlrev_b32 v192, 2, v241")
                e.vmem(f"buffer_load_dwordx4 {V(cK,4)}, v3, {WS}, s24 offen","cs"); e.vmem(f"buffer_load_dwordx4 {V(cQ,4)}, v3, {WS}, s24 offen offset:512","cs")
                e.vmem(f"buffer_load_dword v{cV}, v192, {WS}, s24 offen offset:256","cs")
                if wv==0 or wv==2: e.vmem(f"buffer_load_dwordx4 {V(cX,4)}, v3, {WS}, s24 offen offset:768","cs")
                if wv==1: e.vmem(f"buffer_load_dword v{cX}, v192, {WS}, s24 offen offset:768","cs")
                rest=W.q; W.q=[]
                if hasx:
                    kv={t[0]:t for t in rest}; it=[]
                    for p in range(20):
                        for n in ("K","V"):
                            if (L,n,p) in kv: it.append(kv[(L,n,p)])
                        it.append(((L,"X",p),43,p))
                    W.push(it)
                else: W.push(rest)
                W.push([((L,"Q",p),42,p) for p in range(20)])
                if L>0:
                    W.issue(g.o.get("pfq",0)); g.poll(5*L,236)
                g.stamp(1+12*L)
                g.stage_x(xb,stb,(lambda p: W.issue(g.o.get("pf0",2))) if L==0 else None)
                g.stamp(2+12*L)
                tiles=[(aK,False,lambda p:(L,"K",p)),(aV,True,lambda p:(L,"V",p))]
                if hasx: tiles.append((aX,wv==1,lambda p:(L,"X",p)))
                g.gemm_x(tiles,lambda p:(3 if hasx else 2) if L==0 else g.o.get("pfK",2),chunks=True)
                g.stamp(3+12*L)
                g.load_stats(True); e.wvm("cs")
                e(f"s_lshl_b32 s24, s60, 14\ns_add_u32 s24, s24, {KBUF[L]}\ns_lshl_b32 s25, s{sW}, 12\ns_add_u32 s25, s25, s24\ns_mul_i32 s26, s60, 10240\ns_add_u32 s26, s26, {VBUF[L]}\ns_lshl_b32 s27, s{sW}, 11\ns_add_u32 s27, s27, s26\ns_add_u32 s26, s26, 8192")
                T=24
                if wv==2:
                    for m in range(4): e(f"v_mul_f32 v{194+m}, 0x3ea52b5c, v{140+m}")
                if wv in (0,2):
                    for m in range(4):
                        g.norm_cvt(aX,m,cX,T+16+2*m,False,rs=(140 if wv==0 else 194))
                        e.ds(f"ds_write_b64 v239, {V(T+16+2*m,2)} offset:{LDS_QX-61440+512*m+(2048 if wv==0 else 0)}")
                for m in range(4):
                    g.norm_cvt(aV,m,cV,T+24+2*m,True)
                    if m&1: e.vmem(f"buffer_store_dwordx4 {V(T+24+2*m-2,4)}, v1, {WS}, s27 offen offset:{1024*(m>>1)}{g.SK}")
                if wv==1:
                    for m in range(4):
                        g.norm_cvt(aX,m,cX,T+16+2*m,True)
                        if m&1: e.vmem(f"buffer_store_dwordx4 {V(T+16+2*m-2,4)}, v1, {WS}, s26 offen offset:{1024*(m>>1)}{g.SK}")
                for m in range(4):
                    g.norm_cvt(aK,m,cK,T+4*m,False)
                e.wlg0(); e("s_barrier")
                for m in range(4): e.ds(f"ds_read_b64 {V(T+4*m+2,2)}, v239 offset:{LDS_QX-61440+2048+512*m}",("kx",m))
                for m in range(4): e.ds(f"ds_read_b64 {V(202+4*m,2)}, v239 offset:{LDS_QX-61440+512*m}",("qx",m))
                for m in range(4):
                    e.wlg(("kx",m)); e.vmem(f"buffer_store_dwordx4 {V(T+4*m,4)}, v1, {WS}, s25 offen offset:{1024*m}{g.SK}")
                e.wlg0()
                e(f"v_cmp_eq_u32 vcc, s{sW}, v240")
                for m in range(4):
                    for r in range(2): e(f"v_cndmask_b32 v{202+4*m+r}, 0, v{202+4*m+r}, vcc")
                g.stamp("kv_st")
                g.publish(5*L+1,pf=g.o.get("pfkv",20))
                g.stamp(4+12*L)
                tiles=[(aQ,False,lambda p:(L,"Q",p))]
                g.gemm_x(tiles,lambda p:g.o.get("pfQ",2))
                g.stamp("q_mm")
                e("s_mov_b32 s24, 0x3ea52b5c")
                for m in range(4): e(f"v_mul_f32 v{140+m}, s24, v{140+m}")
                for m in range(4):
                    g.norm_cvt(aQ,m,cQ,200+4*m,False)
                while W.q: assert W.issue(1)==1
                for t_,sl in W.slot.items(): g.maps.setdefault(t_,sl)
            return fn
        g.fork([(f"s_cmp_eq_u32 s{sW}, 0",path(0)),(f"s_cmp_eq_u32 s{sW}, 1",path(1)),(f"s_cmp_eq_u32 s{sW}, 2",path(2)),(None,path(3))])
    def wo_dma(g,L):
        e=g.e
        e(f"s_lshl_b32 s44, s68, 2\ns_add_u32 s44, s44, s{sW}\ns_mul_i32 s44, s44, 25600\ns_add_u32 s44, s44, {W_O}\ns_mul_i32 s70, s{sW}, 25600")
        def one(k):
            if k and k%4==0: e("s_add_u32 s44, s44, 4096\ns_add_u32 s70, s70, 4096")
            e("s_mov_b32 m0, s70")
            e.vmem(f"buffer_load_dwordx4 v1, {WS}, s44 offen offset:{(k%4)*1024} lds",("wod",k))
        return [(lambda k=k: one(k)) for k in range(25)]
    def w1_cursor(g,sg,ps):
        e=g.e
        if ps==0:
            e(f"""s_mul_i32 s63, s{sJ}, 7
s_cmp_eq_u32 s{sJ}, 7
s_cselect_b32 s63, 48, s63
s_lshl_b32 s24, s{sW}, 1
s_add_u32 s63, s63, s24
s_min_u32 s63, s63, 53""")
        if g.o.get("fakej"): e(f"s_lshl_b32 s24, s{sW}, 1\ns_add_u32 s24, s24, {ps}")
        else: e(f"s_add_u32 s24, s63, {ps}\ns_min_u32 s24, s24, 53")
        e(f"s_mul_i32 s24, s24, 40960\ns_add_u32 s{sg}, s24, {W_1}"); g.w.cursor(sg)
    def attention(g,L):
        e=g.e; W=g.w
        NEG="0xf149f2ca"
        S0,P0,OM,OX,VX,MK,QF=24,92,128,132,136,176,200
        e(f"s_mov_b32 s25, {NEG}\nv_lshlrev_b32 v3, 2, v240\nv_mov_b32 v216, s25")
        for d in (4,3,2,1):
            e(f"s_cmp_lt_u32 s{sC}, {d}\ns_cselect_b32 s24, s25, 0")
            for r in range(4): e(f"v_mov_b32 v{MK+8+4*(4-d)+r}, s24")
        for r in range(4):
            e(f"v_add_u32 v217, {r}, v3\nv_cmp_le_u32 vcc, v217, v241\nv_cndmask_b32 v{MK+r}, v216, 0, vcc".replace("v216, 0, vcc","v216, v219, vcc") if False else
              f"v_add_u32 v217, {r}, v3\nv_cmp_gt_u32 vcc, v217, v241\nv_cndmask_b32 v{MK+r}, 0, v216, vcc\nv_cndmask_b32 v{MK+4+r}, v216, v{MK+8+r}, vcc")
        for i in range(40): e(f"v_mov_b32 v{VX+i}, 0x3f803f80")
        for k,d in enumerate((4,3,2,1,0)):
            e(f"""s_sub_u32 s24, s{sC}, {d}
s_cmp_lt_u32 s{sC}, {d}
s_cselect_b32 s24, s{sC}, s24
s_lshl_b32 s24, s24, 3
s_add_u32 s24, s24, s{sJ}
s_lshl_b32 s25, s24, 14
s_lshl_b32 s26, s{sW}, 12
s_add_u32 s25, s25, s26
s_add_u32 s{45+k}, s25, {KBUF[L]}
s_mul_i32 s25, s24, 10240
s_add_u32 s{50+k}, s25, {VBUF[L]}""")
        e(f"s_lshl_b32 s55, s{sW}, 11\nv_add_u32 v218, s55, v1\nv_add_u32 v219, 8192, v1\nv_lshrrev_b32 v3, 2, v241\nv_cmp_eq_u32 s[56:57], s{sW}, v3")
        e(f"s_and_b32 s24, s{sW}, 1\ns_cmp_eq_u32 s24, 1\ns_cselect_b64 s[58:59], -1, 0")
        e(f"s_lshr_b32 s24, s{sW}, 1\ns_lshl_b32 s24, s24, 10\ns_and_b32 s25, s{sW}, 1\ns_lshl_b32 s25, s25, 3\ns_add_u32 s24, s24, s25\nv_add_u32 v229, s24, v238")
        g.poll(5*L+1,237)
        g.stamp(6+12*L)
        def ldK(u):
            sl=W.take((L,"k",u)); o=(u&3)*1024
            e.vmem(f"buffer_load_dwordx4 {A(4*sl,4)}, v1, {WS}, s{45+(u>>2)} offen offset:{o}",(L,"k",u))
        def ldV(pi):
            sl=W.take((L,"v",pi)); o=(pi&1)*1024
            e.vmem(f"buffer_load_dwordx4 {A(4*sl,4)}, v218, {WS}, s{50+(pi>>1)} offen offset:{o}",(L,"v",pi))
        def ldX(pi):
            o=(pi&1)*1024
            e.vmem(f"buffer_load_dwordx4 {V(VX+4*pi,4)}, v219, {WS}, s{50+(pi>>1)} offen offset:{o}",(L,"x",pi))
        e("s_barrier")
        for u in range(17): ldK(u)
        def ldXm(pis):
            e("s_mov_b64 exec, s[56:57]")
            for pi in pis: ldX(pi)
            e("s_mov_b64 exec, -1")
        late=[(lambda pi=pi: ldV(pi)) for pi in range(5)]+[lambda: ldXm(range(5))]+[(lambda pi=pi: ldV(pi)) for pi in range(5,9)]+[lambda: ldXm(range(5,10))]
        late+=[(lambda u=u: ldK(u)) for u in range(17,20)]+[lambda: ldV(9)]
        late+=g.wo_dma(L)
        pto=g.o.get("pt",0)
        if pto&1 and L==0: late.append(lambda: g.pt_x(L))
        if pto&2 and L==0: late.append(lambda: g.pt_h(L))
        if pto&4 and L==0: late.append(lambda: g.pt_kv(1))
        g.w1_cursor(64,0)
        W.push([((L,"W1",0,k),64,k) for k in range(40)])
        g.w1_cursor(65,1)
        W.push([((L,"W1",1,k),65,k) for k in range(40)])
        def cop(i,u):
            if u==i: return V(MK+4,4)
            if u==16+i: return V(MK,4)
            d=4-(u>>2)
            return V(MK+8+4*(4-d),4) if d>0 else "0"
        def qk(i,q):
            u=i+q; e.wvm((L,"k",u))
            e(f"{MF} {V(S0+4*q,4)}, {A(4*W.slot[(L,'k',u)],4)}, {V(QF+4*i,4)}, {cop(i,u)}")
        def pv(i):
            f=[]
            for k in range(9):
                pi=(i>>1)+k
                def a(k=k,pi=pi):
                    e.wvm((L,"v",pi)); e(f"{MF} {V(OM,4)}, {A(4*W.slot[(L,'v',pi)],4)}, {V(P0+4*k,4)}, {V(OM,4) if k else '0'}")
                def b(k=k,pi=pi):
                    e.wvm((L,"x",pi)); e(f"{MF} {V(OX,4)}, {V(VX+4*pi,4)}, {V(P0+4*k,4)}, {V(OX,4) if k else '0'}")
                f+=[a,b]
            return f
        def fin(i):
            e(f"""v_mov_b32 v220, v{OX}
v_mov_b32 v221, v{OX}
v_permlane16_swap_b32 v220, v221
v_cndmask_b32 v220, v221, v220, s[58:59]
v_rcp_f32 v220, v220""")
            for r in range(8): e(f"v_mul_f32 v{OM+r}, v220, v{OM+r}")
            e(f"v_cvt_pk_bf16_f32 v222, v{OM}, v{OM+1}\nv_cvt_pk_bf16_f32 v223, v{OM+2}, v{OM+3}\nv_cvt_pk_bf16_f32 v224, v{OX}, v{OX+1}\nv_cvt_pk_bf16_f32 v225, v{OX+2}, v{OX+3}")
            e.ds(f"ds_write_b64 v229, v[222:223] offset:{OEX+2560*i}")
            e(f"v_cmp_eq_u32 vcc, s{sW}, v240\ns_mov_b64 exec, vcc")
            e.ds(f"ds_write_b64 v239, v[224:225] offset:{OEX+2560*i+2048}"); e("s_mov_b64 exec, -1")
        for q in range(17): qk(0,q)
        g.stamp("a_qk0")
        npf=g.o.get("pfa",3)
        for i in range(4):
            va=[]
            vals=[S0+k for k in range(68)]
            va.append(lambda: e(f"v_max3_f32 v226, v{vals[0]}, v{vals[1]}, v{vals[2]}"))
            va.append(lambda: e(f"v_max3_f32 v228, v{vals[3]}, v{vals[4]}, v{vals[5]}"))
            k=6
            while k<68:
                va.append(lambda k=k: e(f"v_max3_f32 v226, v226, v{vals[k]}, v{vals[k+1]}")); k+=2
                if k<68: va.append(lambda k=k: e(f"v_max3_f32 v228, v228, v{vals[k]}, v{vals[k+1]}")); k+=2
            va.append(lambda: e("v_max_f32 v226, v226, v228\nv_mov_b32 v227, v226\nv_permlane32_swap_b32 v226, v227\nv_max_f32 v226, v226, v227\nv_mov_b32 v227, v226\nv_permlane16_swap_b32 v226, v227\nv_max_f32 v226, v226, v227\nv_mov_b32 v227, v226"))
            for k in range(34): va.append(lambda k=k: e(f"v_pk_add_f32 {V(S0+2*k,2)}, {V(S0+2*k,2)}, v[226:227] neg_lo:[0,1] neg_hi:[0,1]"))
            if i>0:
                m=pv(i-1)
                vi=0
                for mm in m:
                    mm()
                    for _ in range(3):
                        if vi<len(va): va[vi](); vi+=1
                for f in va[vi:]: f()
                fin(i-1)
            else:
                for n_,f in enumerate(va):
                    f()
                    if n_%5==0 and late: late.pop(0)()
            if i%2==0: e(f"v_mov_b32 v{P0+34}, 0\nv_mov_b32 v{P0+35}, 0")
            else: e(f"v_mov_b32 v{P0}, 0\nv_mov_b32 v{P0+1}, 0")
            pend=None
            for q in range(17):
                s=S0+4*q; pp=P0+2*q+(2 if i%2 else 0)
                for r in range(4): e(f"v_exp_f32 v{s+r}, v{s+r}")
                if pend is not None: pend()
                e(f"v_cvt_pk_bf16_f32 v{pp}, v{s}, v{s+1}\nv_cvt_pk_bf16_f32 v{pp+1}, v{s+2}, v{s+3}")
                pend=(lambda q=q: qk(i+1,q)) if i<3 else None
                if late: late.pop(0)()
                elif q%g.o.get("pfa2",2)==1: W.issue(1)
            if pend is not None: pend()
            W.issue(npf)
            g.stamp(f"a_t{i}")
        while late: late.pop(0)()
        for f in pv(3): f()
        for u in range(20): W.rel((L,"k",u))
        fin(3)
        for pi in range(10): W.rel((L,"v",pi))
        g.stamp("a_fin")
        e(f"""s_mul_i32 s24, s{sW}, 2560
v_add_u32 v3, s24, v238
v_add_u32 v229, s24, v239
s_mul_i32 s24, s62, 20480
s_add_u32 s24, s24, {OB[L]}
s_lshl_b32 s25, s{sJ}, 11
s_add_u32 s25, s25, s24
s_lshr_b32 s26, s{sJ}, 1
s_lshl_b32 s26, s26, 10
s_and_b32 s27, s{sJ}, 1
s_lshl_b32 s27, s27, 9
s_add_u32 s26, s26, s27
s_add_u32 s26, s26, 16384
s_add_u32 s26, s26, s24""")
        e.wvm(("wod",24)); e.wlg0(); e("s_barrier")
        e.ds(f"ds_read_b128 v[24:27], v3 offset:{OEX}","oa"); e.ds(f"ds_read_b128 v[28:31], v3 offset:{OEX+1024}","ob"); e.ds(f"ds_read_b64 v[32:33], v229 offset:{OEX+2048}","oc")
        e.wlg("oa"); g.xst(f"buffer_store_dwordx4 v[24:27], v1, {WS}, s25 offen")
        e.wlg("ob"); g.xst(f"buffer_store_dwordx4 v[28:31], v1, {WS}, s25 offen offset:1024")
        e.wlg("oc"); g.xst(f"buffer_store_dwordx2 v[32:33], v2, {WS}, s26 offen")
        g.publish(5*L+2,pf=g.o.get("pfo",24))
    def reduce_epi(g,L,k,final,red=True,pf=0):
        e=g.e
        if red: g.reduce(pf)
        g.epi(L,k,final)
    def reduce(g,pf):
        e=g.e
        for mm in range(3):
            e(f"s_add_u32 s24, s{sW}, {1+mm}\ns_and_b32 s24, s24, 3\ns_mul_i32 s24, s24, 15360\nv_add_u32 v3, s24, v1")
            for nt in range(5): e.ds(f"ds_write_b128 v3, {V(24+20*mm+4*nt,4)} offset:{mm*5120+nt*1024}")
        e(f"s_mul_i32 s24, s{sW}, 15360\nv_add_u32 v3, s24, v1")
        e.wlg0(); e("s_barrier")
        for mm in range(3):
            for nt in range(5): e.ds(f"ds_read_b128 {V(24+20*mm+4*nt,4)}, v3 offset:{mm*5120+nt*1024}",("r",mm,nt))
        for mm in range(3):
            for nt in range(5):
                e.wlg(("r",mm,nt))
                for h in range(2): e(f"v_pk_add_f32 {V(R0+4*nt+2*h,2)}, {V(R0+4*nt+2*h,2)}, {V(24+20*mm+4*nt+2*h,2)}")
        e.lg.clear()
    def epi(g,L,k,final):
        e=g.e
        for i in range(10): e(f"v_cvt_pk_bf16_f32 v{24+i}, v{R0+2*i}, v{R0+2*i+1}")
        if final:
            e(f"""s_lshl_b32 s24, s62, 4
v_add_u32 v3, s24, v241
v_mul_u32_u24 v3, 1280, v3
v_lshlrev_b32 v34, 3, v240
v_add_u32 v3, v3, v34
s_mul_i32 s24, s{sJ}, 160""")
            for nt in range(5): e.vmem(f"buffer_store_dwordx2 {V(24+2*nt,2)}, v3, {OUT}, s24 offen offset:{32*nt}")
            return
        e(f"""s_mul_i32 s24, s62, 20480
s_add_u32 s24, s24, {XF[k]}
s_lshl_b32 s25, s{sJ}, 11
s_add_u32 s25, s25, s24
s_lshr_b32 s26, s{sJ}, 1
s_lshl_b32 s26, s26, 10
s_and_b32 s27, s{sJ}, 1
s_lshl_b32 s27, s27, 9
s_add_u32 s26, s26, s27
s_add_u32 s26, s26, 16384
s_add_u32 s26, s26, s24""")
        g.xst(f"buffer_store_dwordx4 v[24:27], v1, {WS}, s25 offen")
        g.xst(f"buffer_store_dwordx4 v[28:31], v1, {WS}, s25 offen offset:1024")
        g.xst(f"buffer_store_dwordx2 v[32:33], v2, {WS}, s26 offen")
        e(f"v_pk_mul_f32 v[36:37], {V(R0,2)}, {V(R0,2)}\nv_pk_add_f32 v[34:35], {V(R0,2)}, {V(R0+2,2)}\nv_pk_fma_f32 v[36:37], {V(R0+2,2)}, {V(R0+2,2)}, v[36:37]")
        for i in range(2,10): e(f"v_pk_add_f32 v[34:35], v[34:35], {V(R0+2*i,2)}\nv_pk_fma_f32 v[36:37], {V(R0+2*i,2)}, {V(R0+2*i,2)}, v[36:37]")
        e("""v_add_f32 v34, v34, v35
v_add_f32 v35, v36, v37
v_mov_b32 v36, v34
v_mov_b32 v37, v35
v_permlane32_swap_b32 v34, v36
v_permlane32_swap_b32 v35, v37
v_add_f32 v34, v34, v36
v_add_f32 v35, v35, v37
v_mov_b32 v36, v34
v_mov_b32 v37, v35
v_permlane16_swap_b32 v34, v36
v_permlane16_swap_b32 v35, v37
v_add_f32 v34, v34, v36
v_add_f32 v35, v35, v37""")
        e(f"s_lshl_b32 s24, s60, 9\ns_lshl_b32 s25, s{sW}, 7\ns_add_u32 s24, s24, s25\ns_add_u32 s24, s24, {ST[k]}\ns_mov_b64 exec, 0xffff")
        g.xst(f"buffer_store_dwordx2 v[34:35], v2, {WS}, s24 offen"); e("s_mov_b64 exec, -1")
    def accreg(g,mm,nt): return V(24+20*mm+4*nt,4) if mm<3 else V(R0+4*nt,4)
    def wo(g,L):
        e=g.e; W=g.w
        e(f"s_mul_i32 s45, s62, 20480\ns_add_u32 s45, s45, {OB[L]}\ns_add_u32 s46, s45, 16384")
        g.poll(5*L+2,236)
        g.stamp(8+12*L)
        OF=lambda p: 84+4*p
        for p in range(16):
            if p and p%4==0: e("s_add_u32 s45, s45, 4096")
            e.vmem(f"buffer_load_dwordx4 {V(OF(p),4)}, v1, {WS}, s45 offen offset:{1024*(p%4)}{g.LS}",("o",p))
        for x in range(4):
            e.vmem(f"buffer_load_dwordx2 {V(OF(16+x),2)}, v2, {WS}, s46 offen offset:{1024*x}{g.LS}")
            e.vmem(f"buffer_load_dwordx2 {V(OF(16+x)+2,2)}, v2, {WS}, s46 offen offset:{1024*x+512}{g.LS}",("o",16+x))
        seq=[]
        for p in range(20):
            wv,st=(p>>2,p&3) if p<16 else (p-16,4)
            for nt in range(5): seq.append((p,nt,wv*25600+(st*5+nt)*1024))
        NR=8
        def rd(i):
            p,nt,ad=seq[i]; b,o=("v1",ad) if ad<61440 else ("v238",ad-61440)
            e.ds(f"ds_read_b128 {V(24+4*(i%NR),4)}, {b} offset:{o}",("wl",i))
        for i in range(NR-1): rd(i)
        for i,(p,nt,ad) in enumerate(seq):
            if i+NR-1<len(seq): rd(i+NR-1)
            e.wvm(("o",p)); e.wlg(("wl",i)); d=V(R0+4*nt,4)
            e(f"{MF} {d}, {V(24+4*(i%NR),4)}, {V(OF(p),4)}, {d}")
            if g.o.get("pfw",0) and i%g.o.get("pfw",0)==0: W.issue(1)
        g.stamp("wo_mm")
        g.reduce_epi(L,2*L+1,False,red=False)
        g.stamp("wo_red")
        g.publish(5*L+3,pf=g.o.get("pfx",8))
    def push_w2(g,L,n0,n1,fixed):
        it=[]
        for k in range(n0,n1):
            t=(L,"W2",k); it.append((t,66,k))
            if t in g.maps: g.w.fixed[t]=g.maps[t]
        g.w.push(it)
    def ffn1(g,L):
        e=g.e
        g.stamp("wo_pub")
        g.poll(5*L+3,236)
        g.stamp(9+12*L)
        e(f"s_mul_i32 s24, s{sW}, 14\ns_cmp_eq_u32 s{sW}, 3\ns_cselect_b32 s24, 41, s24\ns_mov_b32 s67, s24\ns_mul_i32 s25, s68, 54\ns_add_u32 s24, s24, s25\ns_mul_i32 s24, s24, 5120\ns_add_u32 s66, s24, {W_2}")
        g.w.cursor(66)
        NW2=g.NW2
        aH=(56,72); cS=(176,180); bB=(184,188)
        def ld_cb(ps):
            e(f"s_add_u32 s24, s63, {ps}\ns_min_u32 s24, s24, 53\ns_lshl_b32 s25, s24, 6\ns_lshl_b32 s24, s24, 7\ns_add_u32 s24, s24, {CS_1}\nv_lshlrev_b32 v3, 4, v240\nv_lshlrev_b32 v228, 3, v240")
            for t in range(2):
                e.vmem(f"buffer_load_dwordx4 {V(cS[t]+16*ps,4)}, v3, {WS}, s24 offen offset:{64*t}",("cb",ps))
                e.vmem(f"buffer_load_dwordx2 {V(bB[t]+16*ps,2)}, v228, {B1}, s25 offen offset:{32*t}",("cb",ps))
        def one_pass(ps,pf):
            W=g.w
            e.wvm(("cb",ps))
            for t in range(2):
                b=bB[t]+16*ps
                e(f"v_and_b32 v{b+3}, 0xffff0000, v{b+1}\nv_lshlrev_b32 v{b+2}, 16, v{b+1}\nv_and_b32 v{b+1}, 0xffff0000, v{b}\nv_lshlrev_b32 v{b}, 16, v{b}")
            g.gemm_x([(aH[t],False,(lambda p,t=t:(L,"W1",ps,2*p+t))) for t in range(2)],pf,chunks=(ps==0))
            if ps==0: g.load_stats(False)
            e(f"s_add_u32 s24, s63, {ps}\ns_lshl_b32 s24, s24, 10\ns_mul_i32 s25, s61, 55296\ns_add_u32 s24, s24, s25\ns_add_u32 s24, s24, {HB[L]}")
            for m in range(4):
                for t in range(2):
                    a=aH[t]+4*m; b=bB[t]+16*ps
                    g.norm(aH[t],m,cS[t]+16*ps,False,mul=False)
                    pr,o=g.bc(140+m)
                    for h in range(2): e(f"v_pk_fma_f32 {V(a+2*h,2)}, {V(a+2*h,2)}, {pr}, {V(b+2*h,2)} op_sel:[0,{o},0] op_sel_hi:[1,{o},1]")
                    for r in range(4): e(f"v_max_f32 v{a+r}, 0, v{a+r}")
                    for h in range(2): e(f"v_pk_mul_f32 {V(a+2*h,2)}, {V(a+2*h,2)}, {V(a+2*h,2)}")
                    T=24+4*m+2*t
                    e(f"v_cvt_pk_bf16_f32 v{T}, v{a}, v{a+1}\nv_cvt_pk_bf16_f32 v{T+1}, v{a+2}, v{a+3}")
                g.xst(f"buffer_store_dwordx4 {V(24+4*m,4)}, v1, {WS}, s24 offen")
                if m<3: e("s_add_u32 s24, s24, 55296")
        ld_cb(0); ld_cb(1)
        g.stage_x(XF[2*L+1],ST[2*L+1])
        g.stamp(10+12*L)
        def path(np_):
            def fn():
                W=g.w

                for ps in range(np_,2):
                    W.q=[t for t in W.q if t[0][:3]!=(L,"W1",ps)]
                    for k in range(40):
                        if (L,"W1",ps,k) in W.slot: W.rel((L,"W1",ps,k))
                g.push_w2(L,0,NW2,16)
                if np_==0:
                    for k in range(4): g.chunk(k)
                for ps in range(np_):
                    one_pass(ps,lambda p,ps=ps:(g.o.get("pf1a",3) if ps==0 else (g.o.get("pf1b",3) if p<g.o.get("pf1c",14) else 0))); g.stamp(f"f1_p{ps}")
                g.f1_tail(L,NW2)
            return fn
        g.fork([(f"s_cmp_lt_u32 s{sW}, 3",path(2)),(f"s_cmp_lt_u32 s{sJ}, 6",path(1)),(None,path(0))])
        g.stamp("f1_pub")
    def pt(g,soff):
        g.e.vmem(f"buffer_load_dword v216, v217, {WS}, {soff} offen"+(" sc1" if g.o.get("ptsc") else ""),"pt")
    def pt_kv(g,L):
        e=g.e
        e(f"v_lshlrev_b32 v217, 7, v0\ns_lshl_b32 s24, s60, 14\ns_lshl_b32 s25, s{sW}, 12\ns_add_u32 s24, s24, s25\ns_add_u32 s24, s24, {KBUF[L]}\ns_mov_b32 exec_hi, 0")
        g.pt("s24")
        e(f"s_mul_i32 s24, s60, 10240\ns_mul_i32 s25, s{sW}, 2560\ns_add_u32 s24, s24, s25\ns_add_u32 s24, s24, {VBUF[L]}\ns_mov_b64 exec, 0xfffff")
        g.pt("s24"); e("s_mov_b64 exec, -1")
    def pt_x(g,L):
        e=g.e
        e(f"""v_lshlrev_b32 v217, 7, v0
s_lshl_b32 s24, s{sJ}, 11
s_lshr_b32 s25, s{sJ}, 1
s_lshl_b32 s25, s25, 10
s_and_b32 s26, s{sJ}, 1
s_lshl_b32 s26, s26, 9
s_add_u32 s25, s25, s26
s_add_u32 s25, s25, {16384-2048}
v_cmp_gt_u32 vcc, 16, v0
v_mov_b32 v216, s25
v_mov_b32 v3, s24
v_cndmask_b32 v216, v216, v3, vcc
v_add_u32 v217, v217, v216
s_mov_b64 exec, 0xfffff""")
        bases=[QB]
        for b in bases:
            e(f"s_mul_i32 s24, s62, 20480\ns_add_u32 s24, s24, {b}"); g.pt("s24")
        e("s_mov_b64 exec, 1\nv_mov_b32 v217, 0")
        for b in [ST[2*L+1]]+([ST[2*L+2]] if L==0 else []):
            e(f"s_lshl_b32 s24, s60, 9\ns_lshl_b32 s25, s{sW}, 7\ns_add_u32 s24, s24, s25\ns_add_u32 s24, s24, {b}"); g.pt("s24")
        e("s_mov_b64 exec, -1")
    def pt_h(g,L):
        e=g.e; sk=e.lab("PH")
        e(f"""v_lshrrev_b32 v217, 3, v0
v_and_b32 v216, 3, v217
v_lshrrev_b32 v217, 2, v217
s_mov_b32 s24, 55296
v_mul_lo_u32 v216, v216, s24
v_lshlrev_b32 v217, 10, v217
v_add_u32 v217, v217, v216
v_and_b32 v216, 7, v0
v_lshlrev_b32 v216, 7, v216
v_add_u32 v217, v217, v216
s_lshl_b32 s24, s63, 10
s_mul_i32 s25, s61, 55296
s_add_u32 s24, s24, s25
s_add_u32 s24, s24, {HB[L]}
s_cmp_lt_u32 s{sW}, 3
s_cselect_b32 exec_hi, -1, 0
s_cmp_eq_u32 s{sW}, 3
s_cselect_b32 s25, s{sJ}, 0
s_cmp_ge_u32 s25, 6
s_cbranch_scc1 {sk}""")
        vm0=e.vm.copy(); g.pt("s24"); e.vm.merge(vm0)
        e(f"{sk}:\ns_mov_b64 exec, -1")
    def f1_tail(g,L,NW2):
        W=g.w
        g.publish(5*L+4,pf=len(W.q))
        while W.q: assert W.issue(1)==1
        for t_,sl in W.slot.items(): g.maps.setdefault(t_,sl)
    def ffn2(g,L):
        e=g.e; W=g.w; last=(L==1)
        for mm in range(4):
            e(f"s_add_u32 s24, s{sW}, {1+mm}\ns_and_b32 s24, s24, 3\ns_add_u32 s24, s24, s61\ns_mul_i32 s24, s24, 54\ns_add_u32 s24, s24, s67\ns_lshl_b32 s24, s24, 10\ns_add_u32 s{45+mm}, s24, {HB[L]}")
            W.cursor(45+mm)
        e(f"s_mul_i32 s24, s{sJ}, 160\nv_lshlrev_b32 v3, 3, v240")
        for nt in range(5): e.vmem(f"buffer_load_dwordx2 {V(84+2*nt,2)}, v3, {B2}, s24 offen offset:{32*nt}","b2")
        e.wvm("b2")
        for i in range(10):
            e(f"v_lshlrev_b32 v94, 16, v{84+i}\nv_and_b32 v95, 0xffff0000, v{84+i}\nv_pk_add_f32 {V(R0+2*i,2)}, {V(R0+2*i,2)}, v[94:95]")
        g.poll(5*L+4,236)
        g.stamp(11+12*L)
        it=[]
        for st in range(14):
            for mm in range(4): it.append(((L,"h",st,mm),45+mm,st,g.LS))
            for nt in range(5):
                k=st*5+nt
                if k>=g.NW2: it.append(((L,"W2",k),66,k))
        W.push(it)
        W.issue(g.o.get("pfh",12))
        for st in range(14):
            if st==13:
                for mm in range(4): W.use((L,"h",st,mm))
                for nt in range(5): W.use((L,"W2",st*5+nt))
                sk=e.lab("SK"); e(f"s_cmp_ge_u32 s{sW}, 2\ns_cbranch_scc1 {sk}")
            for nt in range(5):
                a=W.use((L,"W2",st*5+nt))
                for mm in range(4):
                    b=W.use((L,"h",st,mm)); d=g.accreg(mm,nt)
                    e(f"{MF} {d}, {a}, {b}, {d if (st or mm==3) else '0'}")
                    if mm==1 and st<13: W.issue(1)
                W.rel((L,"W2",st*5+nt))
                if st<13: W.issue(1)
            for mm in range(4): W.rel((L,"h",st,mm))
            if st==13: e(f"s_nop 7\n{sk}:")
        g.stamp("f2_mm")
        if not last:
            g.qkv_cursors(); g.push_kv(L+1)
        W.issue(g.o.get("pf2",16))
        g.reduce_epi(L,2,last)
        g.stamp("f2_red")
        if not last: g.publish(5*L+5,pf=g.o.get("pf3",16))
def gen_main(name,opts):
    g=G(opts); e=g.e; upto=opts.get("upto",99)
    g.prologue(name)
    g.stamp(0)
    g.qkv_cursors(); g.push_kv(0)
    n=0
    for L in range(2):
        for ph,st in ((g.qkv,5),(g.attention,7),(g.wo,None),(g.ffn1,None),(g.ffn2,12)):
            if n>=upto: break
            g.curL=L; ph(L); n+=1
            if st is not None: g.stamp(st+12*L)
    e("s_waitcnt vmcnt(0)\nM_END:\ns_endpgm")
    if opts.get("fine") is not None: print("STAMPS",g.names)
    return fix_hazards(e.L)
```

```python
from emit import *
from lay import *
PREP="prep_kernel"
def srd(e,d,p,size):
    e(f"s_mov_b32 s{d}, s{p}\ns_mov_b32 s{d+1}, s{p+1}\ns_mov_b32 s{d+2}, {size}\ns_mov_b32 s{d+3}, 0x00020000")
def gen_prep(opts={}):
    e=E()
    e(f""".globl {PREP}
.p2align 8
.type {PREP},@function
{PREP}:
s_cmp_ge_u32 s2, 504
s_cbranch_scc1 P_END
s_load_dwordx4 s[16:19], s[0:1], 0
s_load_dwordx2 s[20:21], s[0:1], 16
s_load_dwordx2 s[22:23], s[0:1], 32
s_load_dwordx2 s[24:25], s[0:1], 48
s_load_dwordx2 s[26:27], s[0:1], 80
s_and_b32 s3, s2, 7
s_mul_i32 s3, s3, 63
s_lshr_b32 s12, s2, 3
s_add_u32 s3, s3, s12
v_lshrrev_b32 v1, 6, v0
v_and_b32 v0, 63, v0
s_nop 0
v_readfirstlane_b32 s12, v1
v_lshlrev_b32 v2, 4, v0
v_lshlrev_b32 v3, 3, v0
v_lshrrev_b32 v4, 2, v0
v_and_b32 v5, 3, v0
s_mul_i32 s13, s12, 5120
v_add_u32 v3, s13, v3
s_mul_i32 s14, s12, 5
s_waitcnt lgkmcnt(0)""")
    srd(e,8,26,WS_USED)
    pw=opts.get("pw",0)
    rng=[]
    if pw&4: rng.append((KBUF[0],HB[0]-KBUF[0]))
    if pw&2: rng.append((HB[0],WS_USED-HB[0]))
    for (b0,sz) in rng:
        nb=(sz//1024+2015)//2016
        e(f"s_lshl_b32 s28, s2, 2\ns_add_u32 s28, s28, s12\ns_mul_i32 s28, s28, {nb*1024}\ns_add_u32 s29, s28, {b0}")
        for k in range(nb):
            if k and k%4==0: e("s_add_u32 s29, s29, 4096\ns_add_u32 s28, s28, 4096")
            lab=f"P_W{b0}_{k}"
            e(f"s_cmp_lt_u32 s28, {sz-(k%4)*1024}\ns_cbranch_scc0 {lab}")
            e.vmem(f"buffer_store_dwordx4 v[0:3], v2, s[8:11], s29 offen offset:{(k%4)*1024}")
            e(f"{lab}:")
    tl=opts.get("tlb",0)
    if tl:
        nch=(WS_USED+(64<<tl)-1)//(64<<tl)
        e(f"""s_lshr_b32 s28, s2, 3
s_lshl_b32 s28, s28, 2
s_add_u32 s28, s28, s12
s_cmp_lt_u32 s28, {nch}
s_cbranch_scc0 P_NT
s_lshl_b32 s28, s28, 6
v_add_u32 v60, s28, v0
v_lshlrev_b32 v60, {tl}, v60""")
        e.vmem(f"buffer_load_dword v61, v60, s[8:11], 0 offen")
        e("P_NT:")
    e("""s_cmp_lt_u32 s3, 120
s_cbranch_scc1 P_QKV
s_cmp_lt_u32 s3, 228
s_cbranch_scc1 P_W1
s_cmp_lt_u32 s3, 268
s_cbranch_scc1 P_WO
s_cmp_lt_u32 s3, 376
s_cbranch_scc1 P_W2
s_branch P_X""")
    def xrows(i):
        e(f"""s_add_u32 s30, s14, {i}
s_lshr_b32 s31, s30, 1
s_mul_i32 s31, s31, 80
s_and_b32 s32, s30, 1
s_lshl_b32 s32, s32, 5
s_add_u32 s31, s31, s32
s_sub_u32 s32, s30, 16
s_mul_i32 s32, s32, 160
s_add_u32 s32, s32, 64
s_cmp_lt_u32 s30, 16
s_cselect_b32 s31, s31, s32
s_cselect_b32 s32, 16, 80
s_add_u32 s32, s32, s31""")
    def loads(i,rowb,vo):
        e(f"""s_mul_i32 s31, s31, {rowb}
s_mul_i32 s32, s32, {rowb}
s_add_u32 s31, s31, s15
s_add_u32 s32, s32, s15""")
        e.vmem(f"buffer_load_dwordx2 v[{16+4*i}:{17+4*i}], {vo}, s[4:7], s31 offen")
        e.vmem(f"buffer_load_dwordx2 v[{18+4*i}:{19+4*i}], {vo}, s[4:7], s32 offen")
    def tail(cs,nm):
        e.wvm0()
        for i in range(10): e(f"ds_write_b64 v3, v[{16+2*i}:{17+2*i}] offset:{512*i}")
        e("s_waitcnt lgkmcnt(0)")
        for i in range(10): e(f"ds_read_b64_tr_b16 v[{16+2*i}:{17+2*i}], v3 offset:{512*i}")
        e("s_waitcnt lgkmcnt(0)")
        for i in range(5): e(f"buffer_store_dwordx4 v[{16+4*i}:{19+4*i}], v2, s[8:11], s{40+i} offen")
        if cs:
            e("v_mov_b32 v8, 0x3f803f80\nv_mov_b32 v9, 0x3f803f80\nv_mov_b32 v10, 0x3f803f80\nv_mov_b32 v11, 0x3f803f80")
            e("v_mov_b32 v12, 0\nv_mov_b32 v13, 0\nv_mov_b32 v14, 0\nv_mov_b32 v15, 0")
            for i in range(5): e(f"v_mfma_f32_16x16x32_bf16 v[12:15], v[{16+4*i}:{19+4*i}], v[8:11], v[12:15]")
            e(f"""s_lshl_b32 s13, s12, 10
v_add_u32 v6, s13, v2
s_barrier
ds_write_b128 v6, v[12:15] offset:20480
s_waitcnt lgkmcnt(0)
s_barrier
s_cmp_lg_u32 s12, 0
s_cbranch_scc1 P_FIN
ds_read_b128 v[16:19], v2 offset:{20480+1024}
ds_read_b128 v[20:23], v2 offset:{20480+2048}
ds_read_b128 v[24:27], v2 offset:{20480+3072}
s_waitcnt lgkmcnt(0)""")
            for r in range(4): e(f"v_add_f32 v{12+r}, v{12+r}, v{16+r}\nv_add_f32 v{20+r}, v{20+r}, v{24+r}")
            for r in range(4): e(f"v_add_f32 v{12+r}, v{12+r}, v{20+r}")
            e(f"""v_lshrrev_b32 v6, 4, v0
v_lshlrev_b32 v6, 4, v6
v_and_b32 v7, 15, v0
v_cmp_eq_u32 vcc, 0, v7
s_and_saveexec_b64 s[34:35], vcc
buffer_store_dwordx4 v[12:15], v6, s[8:11], s50 offen""")
        e("s_branch P_FIN")
    e("P_QKV:")
    srd(e,4,18,640*1920*2)
    e(f"""s_mul_i32 s33, s3, 4370
s_lshr_b32 s33, s33, 16
s_mul_i32 s34, s33, 15
s_sub_u32 s34, s3, s34
s_lshr_b32 s35, s34, 2
s_sub_u32 s36, s34, 12
s_cmp_lt_u32 s34, 12
s_cselect_b32 s35, s35, s36
s_add_u32 s35, s35, 1
s_cmp_eq_u32 s35, 3
s_cselect_b32 s35, 0, s35
s_mul_i32 s35, s35, 640
s_mul_i32 s36, s33, 80
s_add_u32 s35, s35, s36
s_and_b32 s36, s34, 3
s_mul_i32 s36, s36, 20
s_cmp_lt_u32 s34, 12
s_cselect_b32 s36, s36, 16
s_cselect_b32 s37, 8, 40
s_add_u32 s15, s35, s36
s_lshl_b32 s15, s15, 1
v_mul_lo_u32 v6, v5, s37
s_mov_b32 s37, 3840
v_mul_lo_u32 v7, v4, s37
v_add_u32 v6, v6, v7
s_lshl_b32 s50, s3, 6
s_add_u32 s50, s50, {CS_QKV}""")
    for i in range(5):
        xrows(i)
        e(f"s_mul_i32 s{40+i}, s3, 20\ns_add_u32 s{40+i}, s{40+i}, s30\ns_lshl_b32 s{40+i}, s{40+i}, 10\ns_add_u32 s{40+i}, s{40+i}, {W_QKV}")
        loads(i,3840,"v6")
    tail(True,"q")
    e("P_W1:")
    srd(e,4,22,640*1728*2)
    e(f"""s_sub_u32 s33, s3, 120
s_lshl_b32 s15, s33, 5
v_lshlrev_b32 v6, 3, v5
s_mov_b32 s37, 3456
v_mul_lo_u32 v7, v4, s37
v_add_u32 v6, v6, v7
s_lshl_b32 s50, s33, 6
s_add_u32 s50, s50, {CS_1}
s_lshr_b32 s34, s33, 1
s_mul_i32 s34, s34, 40
s_and_b32 s35, s33, 1
s_add_u32 s34, s34, s35""")
    for i in range(5):
        xrows(i)
        e(f"s_lshl_b32 s{40+i}, s30, 1\ns_add_u32 s{40+i}, s{40+i}, s34\ns_lshl_b32 s{40+i}, s{40+i}, 10\ns_add_u32 s{40+i}, s{40+i}, {W_1}")
        loads(i,3456,"v6")
    tail(True,"1")
    e("P_WO:")
    srd(e,4,20,640*640*2)
    e(f"""s_sub_u32 s33, s3, 228
s_lshl_b32 s15, s33, 5
s_mul_i32 s34, s33, 13108
s_lshr_b32 s34, s34, 16
s_mul_i32 s35, s34, 5
s_sub_u32 s35, s33, s35
s_mul_i32 s34, s34, 100
s_add_u32 s34, s34, s35
v_lshlrev_b32 v6, 3, v5
s_mov_b32 s37, 1280
v_mul_lo_u32 v7, v4, s37
v_add_u32 v7, v6, v7
v_lshrrev_b32 v8, 2, v4
v_mul_u32_u24 v8, 20, v8
v_and_b32 v9, 3, v4
v_add_u32 v8, v8, v9
v_mul_lo_u32 v8, v8, s37
v_add_u32 v8, v6, v8""")
    for i in range(5):
        e(f"""s_add_u32 s30, s14, {i}
s_lshr_b32 s31, s30, 1
s_mul_i32 s31, s31, 80
s_and_b32 s32, s30, 1
s_mul_i32 s32, s32, 40
s_add_u32 s31, s31, s32
s_sub_u32 s36, s30, 16
s_mul_i32 s32, s36, 160
s_add_u32 s32, s32, 16
s_lshr_b32 s38, s30, 2
s_and_b32 s39, s30, 3
s_cmp_lt_u32 s30, 16
s_cselect_b32 s31, s31, s32
s_cselect_b32 s32, 20, 80
s_cselect_b32 s38, s38, s36
s_cselect_b32 s39, s39, 4
s_cselect_b64 s[52:53], -1, 0
s_add_u32 s32, s32, s31
s_mul_i32 s38, s38, 5
s_add_u32 s38, s38, s39
s_mul_i32 s38, s38, 5
s_add_u32 s38, s38, s34
s_lshl_b32 s38, s38, 10
s_add_u32 s{40+i}, s38, {W_O}
v_cndmask_b32 v{40+i}, v8, v7, s[52:53]""")
        loads(i,1280,f"v{40+i}")
    tail(False,"o")
    e("P_W2:")
    srd(e,4,24,1728*640*2)
    e(f"""s_sub_u32 s33, s3, 268
s_mul_i32 s33, s33, 20
s_add_u32 s33, s33, s14
v_lshlrev_b32 v6, 3, v5
s_mov_b32 s37, 1280
v_mul_lo_u32 v7, v4, s37
v_add_u32 v6, v6, v7""")
    for i in range(5):
        e(f"""s_add_u32 s30, s33, {i}
s_mul_i32 s34, s30, 1214
s_lshr_b32 s34, s34, 16
s_mul_i32 s35, s34, 54
s_sub_u32 s35, s30, s35
s_lshl_b32 s15, s34, 5
s_mul_i32 s36, s34, 13108
s_lshr_b32 s36, s36, 16
s_mul_i32 s38, s36, 5
s_sub_u32 s38, s34, s38
s_mul_i32 s36, s36, 54
s_add_u32 s36, s36, s35
s_mul_i32 s36, s36, 5
s_add_u32 s36, s36, s38
s_lshl_b32 s36, s36, 10
s_add_u32 s{40+i}, s36, {W_2}
s_lshl_b32 s31, s35, 5
s_add_u32 s32, s31, 16""")
        loads(i,1280,"v6")
    tail(False,"2")
    e("P_X:")
    srd(e,4,16,2048*1280)
    e(f"""s_sub_u32 s33, s3, 376
v_and_b32 v7, 15, v0
v_mul_u32_u24 v6, 1280, v7
v_lshrrev_b32 v8, 4, v0
v_lshlrev_b32 v8, 3, v8
v_add_u32 v6, v6, v8
s_mul_i32 s34, s33, {16*1280}""".replace("v_mul_u32_u24 v6, 1280, v7","v_mul_u32_u24 v6, 0x500, v7"))
    for i in range(5):
        xrows(i)
        e(f"""s_lshl_b32 s31, s31, 1
s_lshl_b32 s32, s32, 1
s_add_u32 s31, s31, s34
s_add_u32 s32, s32, s34
s_mul_i32 s{40+i}, s33, 20
s_add_u32 s{40+i}, s{40+i}, s30
s_lshl_b32 s{40+i}, s{40+i}, 10
s_add_u32 s{40+i}, s{40+i}, {XF[0]}
s_cmp_lt_u32 s30, 16
s_cselect_b32 s{45+i}, 8, 512""")
        e.vmem(f"buffer_load_dwordx2 v[{16+4*i}:{17+4*i}], v6, s[4:7], s31 offen")
        e.vmem(f"buffer_load_dwordx2 v[{18+4*i}:{19+4*i}], v6, s[4:7], s32 offen")
    e.wvm0()
    e("v_lshlrev_b32 v9, 3, v0")
    for i in range(5):
        e(f"""s_cmp_eq_u32 s{45+i}, 8
s_cselect_b64 s[52:53], -1, 0
v_cndmask_b32 v10, v9, v2, s[52:53]
v_add_u32 v11, s{45+i}, v10
buffer_store_dwordx2 v[{16+4*i}:{17+4*i}], v10, s[8:11], s{40+i} offen
buffer_store_dwordx2 v[{18+4*i}:{19+4*i}], v11, s[8:11], s{40+i} offen""")
    if opts.get("pw",0)&1:
        for i in range(5): e(f"s_add_u32 s{40+i}, s{40+i}, {QB-PB}\nbuffer_store_dwordx4 v[{16+4*i}:{19+4*i}], v2, s[8:11], s{40+i} offen")
    e("v_mov_b32 v12, 0\nv_mov_b32 v13, 0\nv_mov_b32 v14, 0\nv_mov_b32 v15, 0\nv_mov_b32 v8, 0x3f803f80")
    for k in range(20): e(f"v_dot2_f32_bf16 v12, v{16+k}, v8, v12\ns_nop 2\nv_dot2_f32_bf16 v13, v{16+k}, v{16+k}, v13\ns_nop 2")
    for sw in ("v_permlane32_swap_b32","v_permlane16_swap_b32"):
        e(f"""v_mov_b32 v36, v12
v_mov_b32 v37, v13
s_nop 1
{sw} v12, v36
{sw} v13, v37
s_nop 1
v_add_f32 v12, v12, v36
v_add_f32 v13, v13, v37""")
    e(f"""s_lshr_b32 s34, s33, 2
s_lshl_b32 s34, s34, 3
s_lshl_b32 s35, s12, 1
s_add_u32 s34, s34, s35
s_lshl_b32 s34, s34, 9
s_and_b32 s35, s33, 3
s_lshl_b32 s35, s35, 7
s_add_u32 s34, s34, s35
s_add_u32 s34, s34, {ST[0]}
v_mov_b32 v14, 0
v_mov_b32 v15, 0
v_cmp_gt_u32 vcc, 16, v0
s_and_saveexec_b64 s[36:37], vcc
buffer_store_dwordx2 v[12:13], v9, s[8:11], s34 offen
buffer_store_dwordx2 v[14:15], v9, s[8:11], s34 offen offset:512
s_mov_b64 exec, s[36:37]
s_cmp_lt_u32 s33, 40
s_cbranch_scc0 P_FIN
s_cmp_eq_u32 s12, 0
s_cbranch_scc0 P_FIN
s_lshl_b32 s34, s33, 7
s_add_u32 s34, s34, {FLAGS}
v_lshlrev_b32 v9, 2, v0
v_cmp_gt_u32 vcc, 32, v0
s_and_saveexec_b64 s[36:37], vcc
buffer_store_dword v14, v9, s[8:11], s34 offen
P_FIN:
s_waitcnt vmcnt(0)
P_END:
s_endpgm""")
    return fix_hazards(e.L)
def desc(name,vg,acc,sg=102):
    return f""".amdhsa_kernel {name}
  .amdhsa_next_free_vgpr {vg}
  .amdhsa_next_free_sgpr {sg}
  .amdhsa_accum_offset {acc}
  .amdhsa_group_segment_fixed_size 0
  .amdhsa_kernarg_size 88
  .amdhsa_user_sgpr_count 2
  .amdhsa_user_sgpr_kernarg_segment_ptr 1
  .amdhsa_system_sgpr_workgroup_id_x 1
.end_amdhsa_kernel
"""
```

```python
KB=1024
off=0
def alloc(n):
    global off
    o=off; off+=(n+4095)//4096*4096; return o
W_QKV=alloc(8*15*20*KB)
W_O=alloc(8*4*5*5*KB)
W_1=alloc(54*20*2*KB)
W_2=alloc(8*54*5*KB)
CS_QKV=alloc(120*64)
CS_1=alloc(108*64)
FLAGS=alloc(32*128+8*128)
PB=alloc(128*20*KB); QB=alloc(128*20*KB)
XF=[PB,PB,QB,QB]
ST=[alloc(32*8*64*8) for _ in range(4)]
KBUF=[alloc(32*8*4*4*KB) for _ in range(2)]
VBUF=[alloc(32*8*5*2*KB) for _ in range(2)]
OB=[QB,PB]
_h=alloc(128*54*KB); HB=[_h,_h]
WS_USED=off
def xk_rows(p):
    if p<16: b=80*(p>>1)+32*(p&1); return b,b+16
    e=p-16; return 160*e+64,160*e+144
QKV_SEC=[1]*4+[2]*4+[0]*4+[1,2,0]
if __name__=="__main__": print(WS_USED, WS_USED/2**20)
```

```python
import sys
from emit import *
from lay import *
from gen_prep import gen_prep, desc, PREP
import gen_main
MAIN="interleave_layers__sliding_block__dense_activation_squared_relu__prompt_kernel"
def build(opts=None):
    opts=opts or {}
    hdr=f"""; generated by dev/gen.py (hand-written generator)
; @launch kernel={PREP} grid=(504,1,1) block=(256,1,1) lds=24576
; @launch kernel={MAIN} grid=(256,1,1) block=(256,1,1) lds=118784
.amdgcn_target "amdgcn-amd-amdhsa--gfx950"
.text
"""
    P=gen_prep(opts)
    if opts.get('noprep'): P=[l.replace('s_cmp_ge_u32 s2, 504','s_cmp_ge_u32 s2, 0') for l in P]
    L=P+gen_main.gen_main(MAIN,opts)
    body="\n".join(L)+"\n"
    ro='.section .rodata,"a"\n.p2align 6\n'+desc(PREP,*((76,76) if (opts.get('pcp',1) or opts.get('ppf',0)) else (64,64)))+".p2align 6\n"+desc(MAIN,512,256)
    return hdr+body+ro
if __name__=="__main__":
    import sys
    o=eval(sys.argv[1]) if len(sys.argv)>1 else {}
    fn=sys.argv[2] if len(sys.argv)>2 else "interleave_layers__sliding_block__dense_activation_squared_relu__prompt.s"
    s=build(o)
    open(fn,"w").write(s)
    print(len(s),"bytes",s.count("\n"),"lines")
```

```python
from emit import *
from lay import *
import copy
MF="v_mfma_f32_16x16x32_bf16"
WS="s[4:7]"; OUT="s[8:11]"; B1="s[12:15]"; B2="s[16:19]"
sC,sJ,sW=20,21,22
sFL=23
sT=[24,25,26,27,28,29,30,31]
R0=4
LDS_ST=102400; LDS_QX=103424; LDS_RED=0; OEX=107520-61440
class WQ:
    def __init__(s,e): s.e=e; s.free=list(range(64)); s.q=[]; s.slot={}; s.cur={}; s.fixed={}
    def copy(s,e):
        c=WQ(e); c.free=list(s.free); c.q=list(s.q); c.slot=dict(s.slot); c.cur=dict(s.cur); c.fixed=dict(s.fixed); return c
    def push(s,items): s.q+=items
    def cursor(s,sg): s.cur[sg]=0
    def issue(s,n=1,mod=""):
        k=0
        while k<n and s.q and s.free:
            it=s.q[0]; tag,sg,idx=it[:3]; m2=it[3] if len(it)>3 else mod
            if tag in s.fixed:
                if s.fixed[tag] not in s.free: break
                sl=s.fixed[tag]; s.free.remove(sl)
            else:
                res=set(s.fixed[t[0]] for t in s.q if t[0] in s.fixed)
                cand=[x for x in s.free if x not in res] or s.free
                sl=cand[0]; s.free.remove(sl)
            s.q.pop(0); s.slot[tag]=sl
            while s.cur[sg]<idx//4: s.e(f"s_add_u32 s{sg}, s{sg}, 4096"); s.cur[sg]+=1
            assert s.cur[sg]==idx//4,(tag,sg,idx,s.cur[sg])
            o=(idx%4)*1024
            s.e.vmem(f"buffer_load_dwordx4 {A(4*sl,4)}, v1, {WS}, s{sg} offen"+(f" offset:{o}" if o else "")+m2,tag); k+=1
        return k
    def ensure(s,tag):
        while tag not in s.slot:
            assert s.q and s.free,("cannot ensure",tag,len(s.q),len(s.free))
            assert s.issue(1)==1,("stuck",tag,s.q[0])
    def use(s,tag):
        s.ensure(tag); s.e.wvm(tag); return A(4*s.slot[tag],4)
    def rel(s,tag): s.free.append(s.slot.pop(tag))
    def take(s,tag): sl=s.free.pop(0); s.slot[tag]=sl; return sl
def interleave(e,mains,fill,per=1,lead=0):
    fill=list(fill); n=len(mains)
    for i,m in enumerate(mains):
        m()
        rem=n-i
        k=-(-len(fill)//rem) if rem>0 else len(fill)
        for _ in range(min(k,len(fill))): fill.pop(0)()
    for f in fill: f()
class G:
    def __init__(g,opts):
        opts=dict(opts)
        if opts.get('plain'): opts['xmode']='plain'
        g.LS='' if opts.get('nols') else ' sc1'
        g.o=opts; g.e=E(); g.w=WQ(g.e); g.nst=0; g.maps={}; g.NW2=opts.get('nw2',48); g.SK='' if opts.get('plainkv') else ' sc1';  g.names=[]; g.curL=0
    def stamp(g,i):
        if not g.o.get("prof"): return
        if g.o.get("fine") is not None:
            if isinstance(i,int): i=f"s{i}"
            if g.curL!=g.o["fine"] and i!="s0": return
            if i not in g.names: g.names.append(i)
            i=g.names.index(i)
            assert i<32
        elif not isinstance(i,int): return
        e=g.e
        e("s_memtime s[98:99]"); e.wlg0()
        e(f"v_mov_b32 v255, s98\ns_lshl_b32 s98, s2, 2\ns_add_u32 s98, s98, s{sW}\ns_lshl_b32 s98, s98, 7\ns_add_u32 s98, s98, {(60<<20)+4*i}")
        e("s_mov_b64 exec, 1"); e.vmem(f"buffer_store_dword v255, off, s[100:103], s98".replace("s[100:103]","s[92:95]")); e("s_mov_b64 exec, -1")
    def xst(g,txt,tag=None):
        e=g.e; m=g.o.get('xmode','auto')
        if m=='sc1': return e.vmem(txt+" sc1")
        if m=='plain': return e.vmem(txt)
        a=e.lab("XS"); b=e.lab("XE")
        e(f"s_cmp_eq_u32 s72, 0\ns_cbranch_scc1 {a}")
        e.vmem(txt)
        e(f"s_branch {b}\n{a}:\n{txt} sc1\n{b}:")
    def cpf(g,va,vd,tag):
        e=g.e; l=e.lab("LPC")
        e(f"""s_getpc_b64 s[34:35]
{l}:
s_lshr_b32 s36, s2, 3
s_lshl_b32 s36, s36, 2
s_add_u32 s36, s36, s{sW}
s_lshl_b32 s36, s36, 10
s_min_u32 s36, s36, M_END-{l}-1024
s_add_u32 s34, s34, s36
s_addc_u32 s35, s35, 0
v_mov_b32 v{va+1}, s35
v_add_co_u32 v{va}, vcc, s34, v1
v_addc_co_u32 v{va+1}, vcc, 0, v{va+1}, vcc""")
        e.vmem(f"global_load_dwordx4 {V(vd,4)}, {V(va,2)}, off",tag)
    def publish(g,seq,pf=0):
        e=g.e; e.vm.p["__st"]=0
        if pf: g.w.issue(pf)
        e.wvm("__st")
        e(f"v_mov_b32 v3, {seq}\ns_mov_b64 exec, 1")
        t=f"buffer_store_dword v3, off, {WS}, s{sFL}"
        if seq%5==1: e.vmem(t+" sc1")
        else: g.xst(t)
        e("s_mov_b64 exec, -1")
    def poll(g,seq,vaddr):
        e=g.e; l=e.lab("PL"); d=e.lab("PD")
        if seq==1 and g.o.get('xmode','auto')=='auto':
            e(f"s_lshl_b32 s25, s{sC}, 5\ns_add_u32 s25, s25, {FLAGS+4096}\nv_and_b32 v217, 7, v0\nv_lshlrev_b32 v217, 2, v217\nv_add_u32 v217, s25, v217")
            e(f"s_mov_b32 s24, {g.o.get('spin',30000)}\n{l}:")
            e(f"buffer_load_dword v3, v{vaddr}, {WS}, 0 offen sc1\nbuffer_load_dword v216, v217, {WS}, 0 offen sc1\ns_waitcnt vmcnt(0)\nv_cmp_eq_u32 vcc, 0, v216\ns_nop 0\nv_cndmask_b32 v3, v3, v216, vcc\nv_cmp_gt_u32 vcc, {seq}, v3\ns_sub_u32 s24, s24, 1\ns_cbranch_scc1 {d}\ns_cbranch_vccnz {l}\n{d}:")
            e(f"v_cmp_eq_u32 vcc, s73, v216\ns_nop 4\ns_cmp_eq_u64 vcc, -1\ns_cselect_b32 s72, 1, 0")
            if g.o.get('dbgsame'): e(f"v_mov_b32 v216, s72\ns_lshl_b32 s25, s2, 2\ns_add_u32 s25, s25, {61<<20}\ns_mov_b64 exec, 1\nbuffer_store_dword v216, off, s[92:95], s25\ns_mov_b64 exec, -1")
            e.vm.clear(); return
        e(f"s_mov_b32 s24, {g.o.get('spin',30000)}\n{l}:")
        e(f"buffer_load_dword v3, v{vaddr}, {WS}, 0 offen sc1\ns_waitcnt vmcnt(0)\nv_cmp_gt_u32 vcc, {seq}, v3\ns_sub_u32 s24, s24, 1\ns_cbranch_scc1 {d}\ns_cbranch_vccnz {l}\n{d}:")
        e.vm.clear()
    def fork(g,paths):
        e=g.e; end=e.lab("FE"); vm0,lg0,w0=e.vm,e.lg,g.w; res=[]; xn0=getattr(g,'xn',0)
        labs=[e.lab("FK") for _ in paths]
        for (c,_),l in zip(paths[:-1],labs): e(c+f"\ns_cbranch_scc1 {l}")
        e(f"s_branch {labs[-1]}")
        for (c,fn),l in zip(paths,labs):
            e.vm=vm0.copy(); e.lg=lg0.copy(); g.w=w0.copy(e); g.xn=xn0
            e(f"{l}:"); fn(); e(f"s_nop 7\ns_branch {end}"); res.append((e.vm,e.lg,g.w))
        e(f"{end}:")
        e.vm,e.lg,g.w=res[0]
        for vm,lg,w in res[1:]:
            e.vm.merge(vm); e.lg.merge(lg)
            assert w.slot==g.w.slot and w.q==g.w.q,(w.slot,g.w.slot,len(w.q),len(g.w.q))
            for k_ in list(g.w.cur):
                if w.cur.get(k_)!=g.w.cur[k_]: del g.w.cur[k_]
        g.w.free=sorted(g.w.free)
    def prologue(g,name):
        e=g.e
        e(f""".globl {name}
.p2align 8
.type {name},@function
{name}:
s_cmp_ge_u32 s2, 256
s_cbranch_scc1 M_END
s_load_dwordx2 s[24:25], s[0:1], 40
s_load_dwordx2 s[26:27], s[0:1], 56
s_load_dwordx2 s[28:29], s[0:1], 64
s_load_dwordx2 s[30:31], s[0:1], 80
v_lshrrev_b32 v1, 6, v0
v_and_b32 v0, 63, v0
s_nop 0
v_readfirstlane_b32 s{sW}, v1
v_lshlrev_b32 v1, 4, v0
v_lshlrev_b32 v2, 3, v0""")
        if g.o.get("xmap"):
            e(f"s_lshr_b32 s{sC}, s2, 3\ns_and_b32 s{sJ}, s2, 7")
        else:
            e(f"s_and_b32 s{sC}, s2, 7\ns_lshl_b32 s{sC}, s{sC}, 2\ns_lshr_b32 s{sJ}, s2, 6\ns_add_u32 s{sC}, s{sC}, s{sJ}\ns_lshr_b32 s{sJ}, s2, 3\ns_and_b32 s{sJ}, s{sJ}, 7")
        e("s_waitcnt lgkmcnt(0)")
        for d,p,sz in ((4,30,WS_USED),(8,28,2048*1280),(12,24,3456),(16,26,1280),(92,30,64<<20)):
            if d==92 and not g.o.get("prof"): continue
            e(f"s_mov_b32 s{d}, s{p}\ns_mov_b32 s{d+1}, s{p+1}\ns_mov_b32 s{d+2}, {sz}\ns_mov_b32 s{d+3}, 0x00020000")
        e(f"""s_mov_b32 s72, 0
s_getreg_b32 s73, hwreg(HW_REG_XCC_ID, 0, 4)
s_add_u32 s73, s73, 1
s_lshl_b32 s24, s{sC}, 5
s_lshl_b32 s25, s{sJ}, 2
s_add_u32 s24, s24, s25
s_add_u32 s24, s24, {FLAGS+4096}
v_mov_b32 v3, s73
s_mov_b64 exec, 1""")
        e.vmem(f"buffer_store_dword v3, off, {WS}, s24 sc1"); e("s_mov_b64 exec, -1")
        e(f"""s_lshl_b32 s24, s{sC}, 7
s_add_u32 s24, s24, {FLAGS}
s_lshl_b32 s25, s{sJ}, 4
s_lshl_b32 s26, s{sW}, 2
s_add_u32 s25, s25, s26
s_add_u32 s{sFL}, s24, s25
v_and_b32 v236, 31, v0
v_lshlrev_b32 v236, 2, v236
v_add_u32 v236, s24, v236
v_lshrrev_b32 v3, 2, v0
v_cmp_gt_u32 vcc, 20, v0
v_cndmask_b32 v3, 0, v3, vcc
v_sub_u32 v237, s{sC}, v3
v_cmp_gt_i32 vcc, 0, v237
v_mov_b32 v3, s{sC}
v_cndmask_b32 v237, v237, v3, vcc
v_lshlrev_b32 v237, 7, v237
v_and_b32 v3, 3, v0
v_lshlrev_b32 v3, 2, v3
v_add_u32 v237, v237, v3
s_lshl_b32 s25, s{sJ}, 4
s_add_u32 s25, s25, {FLAGS}
v_add_u32 v237, s25, v237
v_add_u32 v238, 61440, v1
v_add_u32 v239, 61440, v2
v_lshrrev_b32 v240, 4, v0
v_and_b32 v241, 15, v0
s_mul_i32 s60, s{sC}, 8
s_add_u32 s60, s60, s{sJ}
s_mov_b32 s68, {"0" if g.o.get("fakej") else "s21"}
s_lshl_b32 s61, s{sC}, 2
s_add_u32 s62, s61, s{sW}""")
        e(f"""s_mul_i32 s24, s62, 20480
s_add_u32 s24, s24, {XF[0]}
s_lshl_b32 s25, s{sJ}, 11
s_add_u32 s25, s25, s24
s_lshr_b32 s26, s{sJ}, 1
s_lshl_b32 s26, s26, 10
s_and_b32 s27, s{sJ}, 1
s_lshl_b32 s27, s27, 9
s_add_u32 s26, s26, s27
s_add_u32 s26, s26, 16384
s_add_u32 s26, s26, s24""")
        if g.o.get("cpf",1): g.cpf(36,40,"cpf0")
        if g.o.get("tio",1):
            e("v_lshlrev_b32 v44, 19, v0\ns_mov_b64 exec, 31"); e.vmem(f"buffer_load_dword v45, v44, {OUT}, 0 offen")
            e("s_mov_b64 exec, 1"); e.vmem(f"buffer_load_dword v45, off, {B1}, 0"); e.vmem(f"buffer_load_dword v45, off, {B2}, 0"); e("s_mov_b64 exec, -1")
        e.vmem(f"buffer_load_dwordx4 v[24:27], v1, {WS}, s25 offen","r0")
        e.vmem(f"buffer_load_dwordx4 v[28:31], v1, {WS}, s25 offen offset:1024","r1")
        e.vmem(f"buffer_load_dwordx2 v[32:33], v2, {WS}, s26 offen","r2")
        if g.o.get("pt",2)&8: g.pt_kv(0)
        e.wvm("r2")
        for i in range(10):
            e(f"v_lshlrev_b32 v{R0+2*i}, 16, v{24+i}\nv_and_b32 v{R0+2*i+1}, 0xffff0000, v{24+i}")
    def qkv_cursors(g):
        e=g.e
        e(f"""s_mul_i32 s24, s68, {15*20480}
s_add_u32 s24, s24, {W_QKV}
s_mul_i32 s25, s{sW}, 20480
s_add_u32 s40, s24, s25
s_add_u32 s41, s40, {4*20480}
s_add_u32 s42, s40, {8*20480}
s_add_u32 s43, s40, {12*20480}""")
        for s in (40,41,42,43): g.w.cursor(s)
    def push_kv(g,L):
        it=[]
        for p in range(20): it+=[((L,"K",p),40,p),((L,"V",p),41,p)]
        g.w.push(it)
    def stage_x(g,xb,stb,extra=None):
        e=g.e
        e(f"s_lshl_b32 s26, s60, 9\ns_and_b32 s26, s26, 0xfffff000\ns_lshl_b32 s27, s{sW}, 7\ns_add_u32 s26, s26, s27\ns_add_u32 s26, s26, {stb}")
        e("v_lshrrev_b32 v24, 3, v0\nv_lshlrev_b32 v24, 9, v24\nv_and_b32 v25, 7, v0\nv_lshlrev_b32 v25, 4, v25\nv_add_u32 v24, v24, v25")
        e.vmem(f"buffer_load_dwordx4 v[28:31], v24, {WS}, s26 offen","stat")
        e(f"s_mul_i32 s69, s62, 20480\ns_add_u32 s69, s69, {xb}\ns_mul_i32 s70, s{sW}, 20480")
        g.xn=0
        for p in range(g.o.get("xup",10)):
            g.xdma()
            if extra: extra(p)
        e.wvm("stat")
        for r in range(4): e(f"v_mov_b32 v{32+r}, v{28+r}")
        for r in range(4): e(f"v_permlane32_swap_b32 v{28+r}, v{32+r}")
        for r in range(4): e(f"v_add_f32 v{28+r}, v{28+r}, v{32+r}")
        for r in range(4): e(f"v_mov_b32 v{32+r}, v{28+r}")
        for r in range(4): e(f"v_permlane16_swap_b32 v{28+r}, v{32+r}")
        for r in range(4): e(f"v_add_f32 v{28+r}, v{28+r}, v{32+r}")
        for r in range(4): e(f"v_add_f32_dpp v{28+r}, v{28+r}, v{28+r} row_ror:8 row_mask:0xf bank_mask:0xf")
        e("s_mov_b32 s26, 0xbacccccd\ns_mov_b32 s27, 0x3acccccd")
        e(f"""v_mul_f32 v32, s26, v28
v_mul_f32 v33, s26, v30
v_mul_f32 v34, s27, v29
v_mul_f32 v35, s27, v31
v_fma_f32 v34, -v32, v32, v34
v_fma_f32 v35, -v33, v33, v35
v_max_f32 v34, 0, v34
v_max_f32 v35, 0, v35
v_add_f32 v34, 0x3727c5ac, v34
v_add_f32 v35, 0x3727c5ac, v35
v_rsq_f32 v34, v34
v_rsq_f32 v35, v35
v_and_b32 v24, 7, v0
v_lshlrev_b32 v24, 3, v24
s_lshl_b32 s26, s{sW}, 6
s_add_u32 s26, s26, {LDS_ST}
v_add_u32 v24, s26, v24
s_mov_b64 exec, 0xff""")
        e.ds("ds_write_b64 v24, v[32:33]"); e.ds("ds_write_b64 v24, v[34:35] offset:256"); e("s_mov_b64 exec, -1")
    def xdma(g):
        e=g.e; p=g.xn
        if p>=20: return
        g.xn+=1
        if p and p%4==0: e("s_add_u32 s69, s69, 4096\ns_add_u32 s70, s70, 4096")
        e("s_mov_b32 m0, s70")
        e.vmem(f"buffer_load_dwordx4 v1, {WS}, s69 offen offset:{(p%4)*1024}{g.LS} lds",("xd",p))
    def chunk(g,k):
        e=g.e
        while g.xn<5*k+5: g.xdma()
        e.wvm(("xd",5*k+4))
        if k==0: e.wlg0()
        e("s_barrier")
    def xread(g,p,m,dst):
        e=g.e
        if p<16:
            b,o=("v1",m*20480+p*1024) if m<3 else ("v238",p*1024)
            e.ds(f"ds_read_b128 {V(dst,4)}, {b} offset:{o}",("x",p,m))
        else:
            b,o=("v2",m*20480+p*1024) if m<3 else ("v239",p*1024)
            e.ds(f"ds_read_b64 {V(dst,2)}, {b} offset:{o}")
            e.ds(f"ds_read_b64 {V(dst+2,2)}, {b} offset:{o+512}",("x",p,m))
    def gemm_x(g,tiles,pf,chunks=False):
        e=g.e
        XB=lambda p,m: 24+16*(p&1)+4*m
        if chunks: g.chunk(0)
        for m in range(4): g.xread(0,m,XB(0,m))
        for p in range(20):
            if chunks and p in (4,9,14): g.chunk((p+1)//5)
            mains=[]
            for (acc,sw,tf) in tiles:
                for m in range(4):
                    def mm(acc=acc,sw=sw,tf=tf,m=m,p=p):
                        a=g.w.use(tf(p)); e.wlg(("x",p,m)); x=V(XB(p,m),4); d=V(acc+4*m,4); c=d if p else "0"
                        e(f"{MF} {d}, {x}, {a}, {c}" if sw else f"{MF} {d}, {a}, {x}, {c}")
                        if m==3: g.w.rel(tf(p))
                    mains.append(mm)
            fl=[]
            if p<19:
                for m in range(4): fl.append(lambda m=m,p=p: g.xread(p+1,m,XB(p+1,m)))
            if chunks and p%g.o.get("xev",1)==0: fl.append(g.xdma)
            for _ in range(pf(p)): fl.append(lambda: g.w.issue(1))
            interleave(e,mains,fl)
    def load_stats(g,row):
        e=g.e
        e(f"v_lshlrev_b32 v3, 2, v241\nv_add_u32 v3, {LDS_ST}, v3")
        for m in range(4):
            e.ds(f"ds_read_b32 v{136+m}, v3 offset:{64*m}","s"); e.ds(f"ds_read_b32 v{140+m}, v3 offset:{256+64*m}","s")
        if row:
            e(f"v_lshlrev_b32 v3, 4, v240\nv_add_u32 v3, {LDS_ST}, v3")
            for m in range(4):
                e.ds(f"ds_read_b128 {V(144+4*m,4)}, v3 offset:{64*m}","s"); e.ds(f"ds_read_b128 {V(160+4*m,4)}, v3 offset:{256+64*m}","s")
        e.wlg0()
    def bc(g,r):
        return (V(r&~1,2), r&1)
    def norm(g,acc,m,cs,sw,rs=None,mul=True):
        e=g.e; a=acc+4*m
        for h in range(2):
            d=V(a+2*h,2)
            if sw:
                pr,o=g.bc(cs); e(f"v_pk_fma_f32 {d}, {V(144+4*m+2*h,2)}, {pr}, {d} op_sel:[0,{o},0] op_sel_hi:[1,{o},1]")
            else:
                pr,o=g.bc(136+m); e(f"v_pk_fma_f32 {d}, {V(cs+2*h,2)}, {pr}, {d} op_sel:[0,{o},0] op_sel_hi:[1,{o},1]")
        if not mul: return
        for h in range(2):
            d=V(a+2*h,2)
            if sw: e(f"v_pk_mul_f32 {d}, {d}, {V(160+4*m+2*h,2)}")
            else:
                pr,o=g.bc((rs or 140)+m); e(f"v_pk_mul_f32 {d}, {d}, {pr} op_sel:[0,{o}] op_sel_hi:[1,{o}]")
    def norm_cvt(g,acc,m,cs,dst,sw,rs=None):
        g.norm(acc,m,cs,sw,rs); a=acc+4*m
        g.e(f"v_cvt_pk_bf16_f32 v{dst}, v{a}, v{a+1}\nv_cvt_pk_bf16_f32 v{dst+1}, v{a+2}, v{a+3}")
    def qkv(g,L):
        e=g.e; xb=XF[2*L]; stb=ST[2*L]
        aK,aV,aX,aQ,aQX=56,72,88,104,120
        cK,cQ,cX,cV=176,180,184,188
        def path(wv):
            def fn():
                W=g.w
                hasx=wv<3;
                e(f"s_mul_i32 s24, s{sJ}, 960\ns_lshl_b32 s25, s{sW}, 6\ns_add_u32 s24, s24, s25\ns_add_u32 s24, s24, {CS_QKV}\nv_lshlrev_b32 v3, 4, v240\nv_lshlrev_b32 v192, 2, v241")
                e.vmem(f"buffer_load_dwordx4 {V(cK,4)}, v3, {WS}, s24 offen","cs"); e.vmem(f"buffer_load_dwordx4 {V(cQ,4)}, v3, {WS}, s24 offen offset:512","cs")
                e.vmem(f"buffer_load_dword v{cV}, v192, {WS}, s24 offen offset:256","cs")
                if wv==0 or wv==2: e.vmem(f"buffer_load_dwordx4 {V(cX,4)}, v3, {WS}, s24 offen offset:768","cs")
                if wv==1: e.vmem(f"buffer_load_dword v{cX}, v192, {WS}, s24 offen offset:768","cs")
                rest=W.q; W.q=[]
                if hasx:
                    kv={t[0]:t for t in rest}; it=[]
                    for p in range(20):
                        for n in ("K","V"):
                            if (L,n,p) in kv: it.append(kv[(L,n,p)])
                        it.append(((L,"X",p),43,p))
                    W.push(it)
                else: W.push(rest)
                W.push([((L,"Q",p),42,p) for p in range(20)])
                if L>0:
                    W.issue(g.o.get("pfq",0)); g.poll(5*L,236)
                g.stamp(1+12*L)
                g.stage_x(xb,stb,(lambda p: W.issue(g.o.get("pf0",2))) if L==0 else None)
                g.stamp(2+12*L)
                tiles=[(aK,False,lambda p:(L,"K",p)),(aV,True,lambda p:(L,"V",p))]
                if hasx: tiles.append((aX,wv==1,lambda p:(L,"X",p)))
                g.gemm_x(tiles,lambda p:(3 if hasx else 2) if L==0 else g.o.get("pfK",2),chunks=True)
                g.stamp(3+12*L)
                g.load_stats(True); e.wvm("cs")
                e(f"s_lshl_b32 s24, s60, 14\ns_add_u32 s24, s24, {KBUF[L]}\ns_lshl_b32 s25, s{sW}, 12\ns_add_u32 s25, s25, s24\ns_mul_i32 s26, s60, 10240\ns_add_u32 s26, s26, {VBUF[L]}\ns_lshl_b32 s27, s{sW}, 11\ns_add_u32 s27, s27, s26\ns_add_u32 s26, s26, 8192")
                T=24
                if wv==2:
                    for m in range(4): e(f"v_mul_f32 v{194+m}, 0x3ea52b5c, v{140+m}")
                if wv in (0,2):
                    for m in range(4):
                        g.norm_cvt(aX,m,cX,T+16+2*m,False,rs=(140 if wv==0 else 194))
                        e.ds(f"ds_write_b64 v239, {V(T+16+2*m,2)} offset:{LDS_QX-61440+512*m+(2048 if wv==0 else 0)}")
                for m in range(4):
                    g.norm_cvt(aV,m,cV,T+24+2*m,True)
                    if m&1: e.vmem(f"buffer_store_dwordx4 {V(T+24+2*m-2,4)}, v1, {WS}, s27 offen offset:{1024*(m>>1)}{g.SK}")
                if wv==1:
                    for m in range(4):
                        g.norm_cvt(aX,m,cX,T+16+2*m,True)
                        if m&1: e.vmem(f"buffer_store_dwordx4 {V(T+16+2*m-2,4)}, v1, {WS}, s26 offen offset:{1024*(m>>1)}{g.SK}")
                for m in range(4):
                    g.norm_cvt(aK,m,cK,T+4*m,False)
                e.wlg0(); e("s_barrier")
                for m in range(4): e.ds(f"ds_read_b64 {V(T+4*m+2,2)}, v239 offset:{LDS_QX-61440+2048+512*m}",("kx",m))
                for m in range(4): e.ds(f"ds_read_b64 {V(202+4*m,2)}, v239 offset:{LDS_QX-61440+512*m}",("qx",m))
                for m in range(4):
                    e.wlg(("kx",m)); e.vmem(f"buffer_store_dwordx4 {V(T+4*m,4)}, v1, {WS}, s25 offen offset:{1024*m}{g.SK}")
                e.wlg0()
                e(f"v_cmp_eq_u32 vcc, s{sW}, v240")
                for m in range(4):
                    for r in range(2): e(f"v_cndmask_b32 v{202+4*m+r}, 0, v{202+4*m+r}, vcc")
                g.stamp("kv_st")
                g.publish(5*L+1,pf=g.o.get("pfkv",20))
                g.stamp(4+12*L)
                tiles=[(aQ,False,lambda p:(L,"Q",p))]
                g.gemm_x(tiles,lambda p:g.o.get("pfQ",2))
                g.stamp("q_mm")
                e("s_mov_b32 s24, 0x3ea52b5c")
                for m in range(4): e(f"v_mul_f32 v{140+m}, s24, v{140+m}")
                for m in range(4):
                    g.norm_cvt(aQ,m,cQ,200+4*m,False)
                while W.q: assert W.issue(1)==1
                for t_,sl in W.slot.items(): g.maps.setdefault(t_,sl)
            return fn
        g.fork([(f"s_cmp_eq_u32 s{sW}, 0",path(0)),(f"s_cmp_eq_u32 s{sW}, 1",path(1)),(f"s_cmp_eq_u32 s{sW}, 2",path(2)),(None,path(3))])
    def wo_dma(g,L):
        e=g.e
        e(f"s_lshl_b32 s44, s68, 2\ns_add_u32 s44, s44, s{sW}\ns_mul_i32 s44, s44, 25600\ns_add_u32 s44, s44, {W_O}\ns_mul_i32 s70, s{sW}, 25600")
        def one(k):
            if k and k%4==0: e("s_add_u32 s44, s44, 4096\ns_add_u32 s70, s70, 4096")
            e("s_mov_b32 m0, s70")
            e.vmem(f"buffer_load_dwordx4 v1, {WS}, s44 offen offset:{(k%4)*1024} lds",("wod",k))
        return [(lambda k=k: one(k)) for k in range(25)]
    def w1_cursor(g,sg,ps):
        e=g.e
        if ps==0:
            e(f"""s_mul_i32 s63, s{sJ}, 7
s_cmp_eq_u32 s{sJ}, 7
s_cselect_b32 s63, 48, s63
s_lshl_b32 s24, s{sW}, 1
s_add_u32 s63, s63, s24
s_min_u32 s63, s63, 53""")
        if g.o.get("fakej"): e(f"s_lshl_b32 s24, s{sW}, 1\ns_add_u32 s24, s24, {ps}")
        else: e(f"s_add_u32 s24, s63, {ps}\ns_min_u32 s24, s24, 53")
        e(f"s_mul_i32 s24, s24, 40960\ns_add_u32 s{sg}, s24, {W_1}"); g.w.cursor(sg)
    def attention(g,L):
        e=g.e; W=g.w
        NEG="0xf149f2ca"
        S0,P0,OM,OX,VX,MK,QF=24,92,128,132,136,176,200
        e(f"s_mov_b32 s25, {NEG}\nv_lshlrev_b32 v3, 2, v240\nv_mov_b32 v216, s25")
        for d in (4,3,2,1):
            e(f"s_cmp_lt_u32 s{sC}, {d}\ns_cselect_b32 s24, s25, 0")
            for r in range(4): e(f"v_mov_b32 v{MK+8+4*(4-d)+r}, s24")
        for r in range(4):
            e(f"v_add_u32 v217, {r}, v3\nv_cmp_le_u32 vcc, v217, v241\nv_cndmask_b32 v{MK+r}, v216, 0, vcc".replace("v216, 0, vcc","v216, v219, vcc") if False else
              f"v_add_u32 v217, {r}, v3\nv_cmp_gt_u32 vcc, v217, v241\nv_cndmask_b32 v{MK+r}, 0, v216, vcc\nv_cndmask_b32 v{MK+4+r}, v216, v{MK+8+r}, vcc")
        for i in range(40): e(f"v_mov_b32 v{VX+i}, 0x3f803f80")
        for k,d in enumerate((4,3,2,1,0)):
            e(f"""s_sub_u32 s24, s{sC}, {d}
s_cmp_lt_u32 s{sC}, {d}
s_cselect_b32 s24, s{sC}, s24
s_lshl_b32 s24, s24, 3
s_add_u32 s24, s24, s{sJ}
s_lshl_b32 s25, s24, 14
s_lshl_b32 s26, s{sW}, 12
s_add_u32 s25, s25, s26
s_add_u32 s{45+k}, s25, {KBUF[L]}
s_mul_i32 s25, s24, 10240
s_add_u32 s{50+k}, s25, {VBUF[L]}""")
        e(f"s_lshl_b32 s55, s{sW}, 11\nv_add_u32 v218, s55, v1\nv_add_u32 v219, 8192, v1\nv_lshrrev_b32 v3, 2, v241\nv_cmp_eq_u32 s[56:57], s{sW}, v3")
        e(f"s_and_b32 s24, s{sW}, 1\ns_cmp_eq_u32 s24, 1\ns_cselect_b64 s[58:59], -1, 0")
        e(f"s_lshr_b32 s24, s{sW}, 1\ns_lshl_b32 s24, s24, 10\ns_and_b32 s25, s{sW}, 1\ns_lshl_b32 s25, s25, 3\ns_add_u32 s24, s24, s25\nv_add_u32 v229, s24, v238")
        g.poll(5*L+1,237)
        g.stamp(6+12*L)
        def ldK(u):
            sl=W.take((L,"k",u)); o=(u&3)*1024
            e.vmem(f"buffer_load_dwordx4 {A(4*sl,4)}, v1, {WS}, s{45+(u>>2)} offen offset:{o}",(L,"k",u))
        def ldV(pi):
            sl=W.take((L,"v",pi)); o=(pi&1)*1024
            e.vmem(f"buffer_load_dwordx4 {A(4*sl,4)}, v218, {WS}, s{50+(pi>>1)} offen offset:{o}",(L,"v",pi))
        def ldX(pi):
            o=(pi&1)*1024
            e.vmem(f"buffer_load_dwordx4 {V(VX+4*pi,4)}, v219, {WS}, s{50+(pi>>1)} offen offset:{o}",(L,"x",pi))
        e("s_barrier")
        for u in range(17): ldK(u)
        def ldXm(pis):
            e("s_mov_b64 exec, s[56:57]")
            for pi in pis: ldX(pi)
            e("s_mov_b64 exec, -1")
        late=[(lambda pi=pi: ldV(pi)) for pi in range(5)]+[lambda: ldXm(range(5))]+[(lambda pi=pi: ldV(pi)) for pi in range(5,9)]+[lambda: ldXm(range(5,10))]
        late+=[(lambda u=u: ldK(u)) for u in range(17,20)]+[lambda: ldV(9)]
        late+=g.wo_dma(L)
        pto=g.o.get("pt",2)
        if pto&1 and L==0: late.append(lambda: g.pt_x(L))
        if pto&2 and L==0 and g.o.get("pta",2)<0: late.append(lambda: g.pt_h(L))
        if pto&4 and L==0: late.append(lambda: g.pt_kv(1))
        g.w1_cursor(64,0)
        W.push([((L,"W1",0,k),64,k) for k in range(40)])
        g.w1_cursor(65,1)
        W.push([((L,"W1",1,k),65,k) for k in range(40)])
        def cop(i,u):
            if u==i: return V(MK+4,4)
            if u==16+i: return V(MK,4)
            d=4-(u>>2)
            return V(MK+8+4*(4-d),4) if d>0 else "0"
        def qk(i,q):
            u=i+q; e.wvm((L,"k",u))
            e(f"{MF} {V(S0+4*q,4)}, {A(4*W.slot[(L,'k',u)],4)}, {V(QF+4*i,4)}, {cop(i,u)}")
        def pv(i):
            f=[]
            for k in range(9):
                pi=(i>>1)+k
                def a(k=k,pi=pi):
                    e.wvm((L,"v",pi)); e(f"{MF} {V(OM,4)}, {A(4*W.slot[(L,'v',pi)],4)}, {V(P0+4*k,4)}, {V(OM,4) if k else '0'}")
                def b(k=k,pi=pi):
                    e.wvm((L,"x",pi)); e(f"{MF} {V(OX,4)}, {V(VX+4*pi,4)}, {V(P0+4*k,4)}, {V(OX,4) if k else '0'}")
                f+=[a,b]
            return f
        def fin(i):
            e(f"""v_mov_b32 v220, v{OX}
v_mov_b32 v221, v{OX}
v_permlane16_swap_b32 v220, v221
v_cndmask_b32 v220, v221, v220, s[58:59]
v_rcp_f32 v220, v220""")
            for r in range(8): e(f"v_mul_f32 v{OM+r}, v220, v{OM+r}")
            e(f"v_cvt_pk_bf16_f32 v222, v{OM}, v{OM+1}\nv_cvt_pk_bf16_f32 v223, v{OM+2}, v{OM+3}\nv_cvt_pk_bf16_f32 v224, v{OX}, v{OX+1}\nv_cvt_pk_bf16_f32 v225, v{OX+2}, v{OX+3}")
            e.ds(f"ds_write_b64 v229, v[222:223] offset:{OEX+2560*i}")
            e(f"v_cmp_eq_u32 vcc, s{sW}, v240\ns_mov_b64 exec, vcc")
            e.ds(f"ds_write_b64 v239, v[224:225] offset:{OEX+2560*i+2048}"); e("s_mov_b64 exec, -1")
        for q in range(17): qk(0,q)
        g.stamp("a_qk0")
        npf=g.o.get("pfa",3)
        for i in range(4):
            va=[]
            vals=[S0+k for k in range(68)]
            va.append(lambda: e(f"v_max3_f32 v226, v{vals[0]}, v{vals[1]}, v{vals[2]}"))
            va.append(lambda: e(f"v_max3_f32 v228, v{vals[3]}, v{vals[4]}, v{vals[5]}"))
            k=6
            while k<68:
                va.append(lambda k=k: e(f"v_max3_f32 v226, v226, v{vals[k]}, v{vals[k+1]}")); k+=2
                if k<68: va.append(lambda k=k: e(f"v_max3_f32 v228, v228, v{vals[k]}, v{vals[k+1]}")); k+=2
            va.append(lambda: e("v_max_f32 v226, v226, v228\nv_mov_b32 v227, v226\nv_permlane32_swap_b32 v226, v227\nv_max_f32 v226, v226, v227\nv_mov_b32 v227, v226\nv_permlane16_swap_b32 v226, v227\nv_max_f32 v226, v226, v227\nv_mov_b32 v227, v226"))
            for k in range(34): va.append(lambda k=k: e(f"v_pk_add_f32 {V(S0+2*k,2)}, {V(S0+2*k,2)}, v[226:227] neg_lo:[0,1] neg_hi:[0,1]"))
            if i>0:
                m=pv(i-1)
                vi=0
                for mm in m:
                    mm()
                    for _ in range(3):
                        if vi<len(va): va[vi](); vi+=1
                for f in va[vi:]: f()
                fin(i-1)
            else:
                for n_,f in enumerate(va):
                    f()
                    if n_%5==0 and late: late.pop(0)()
            if i%2==0: e(f"v_mov_b32 v{P0+34}, 0\nv_mov_b32 v{P0+35}, 0")
            else: e(f"v_mov_b32 v{P0}, 0\nv_mov_b32 v{P0+1}, 0")
            pend=None
            for q in range(17):
                s=S0+4*q; pp=P0+2*q+(2 if i%2 else 0)
                for r in range(4): e(f"v_exp_f32 v{s+r}, v{s+r}")
                if pend is not None: pend()
                e(f"v_cvt_pk_bf16_f32 v{pp}, v{s}, v{s+1}\nv_cvt_pk_bf16_f32 v{pp+1}, v{s+2}, v{s+3}")
                pend=(lambda q=q: qk(i+1,q)) if i<3 else None
                if late: late.pop(0)()
                elif q%g.o.get("pfa2",2)==1: W.issue(1)
            if pend is not None: pend()
            W.issue(npf)
            if pto&2 and L==0 and g.o.get("pta",2)==i: g.pt_h(L)
            g.stamp(f"a_t{i}")
        while late: late.pop(0)()
        for f in pv(3): f()
        for u in range(20): W.rel((L,"k",u))
        fin(3)
        for pi in range(10): W.rel((L,"v",pi))
        g.stamp("a_fin")
        e(f"""s_mul_i32 s24, s{sW}, 2560
v_add_u32 v3, s24, v238
v_add_u32 v229, s24, v239
s_mul_i32 s24, s62, 20480
s_add_u32 s24, s24, {OB[L]}
s_lshl_b32 s25, s{sJ}, 11
s_add_u32 s25, s25, s24
s_lshr_b32 s26, s{sJ}, 1
s_lshl_b32 s26, s26, 10
s_and_b32 s27, s{sJ}, 1
s_lshl_b32 s27, s27, 9
s_add_u32 s26, s26, s27
s_add_u32 s26, s26, 16384
s_add_u32 s26, s26, s24""")
        e.wvm(("wod",24)); e.wlg0(); e("s_barrier")
        e.ds(f"ds_read_b128 v[24:27], v3 offset:{OEX}","oa"); e.ds(f"ds_read_b128 v[28:31], v3 offset:{OEX+1024}","ob"); e.ds(f"ds_read_b64 v[32:33], v229 offset:{OEX+2048}","oc")
        e.wlg("oa"); g.xst(f"buffer_store_dwordx4 v[24:27], v1, {WS}, s25 offen")
        e.wlg("ob"); g.xst(f"buffer_store_dwordx4 v[28:31], v1, {WS}, s25 offen offset:1024")
        e.wlg("oc"); g.xst(f"buffer_store_dwordx2 v[32:33], v2, {WS}, s26 offen")
        g.publish(5*L+2,pf=g.o.get("pfo",24))
    def reduce_epi(g,L,k,final,red=True,pf=0):
        e=g.e
        if red: g.reduce(pf)
        g.epi(L,k,final)
    def reduce(g,pf):
        e=g.e
        for mm in range(3):
            e(f"s_add_u32 s24, s{sW}, {1+mm}\ns_and_b32 s24, s24, 3\ns_mul_i32 s24, s24, 15360\nv_add_u32 v3, s24, v1")
            for nt in range(5): e.ds(f"ds_write_b128 v3, {V(24+20*mm+4*nt,4)} offset:{mm*5120+nt*1024}")
        e(f"s_mul_i32 s24, s{sW}, 15360\nv_add_u32 v3, s24, v1")
        e.wlg0(); e("s_barrier")
        for mm in range(3):
            for nt in range(5): e.ds(f"ds_read_b128 {V(24+20*mm+4*nt,4)}, v3 offset:{mm*5120+nt*1024}",("r",mm,nt))
        for mm in range(3):
            for nt in range(5):
                e.wlg(("r",mm,nt))
                for h in range(2): e(f"v_pk_add_f32 {V(R0+4*nt+2*h,2)}, {V(R0+4*nt+2*h,2)}, {V(24+20*mm+4*nt+2*h,2)}")
        e.lg.clear()
    def epi(g,L,k,final):
        e=g.e
        for i in range(10): e(f"v_cvt_pk_bf16_f32 v{24+i}, v{R0+2*i}, v{R0+2*i+1}")
        if final:
            e(f"""s_lshl_b32 s24, s62, 4
v_add_u32 v3, s24, v241
v_mul_u32_u24 v3, 1280, v3
v_lshlrev_b32 v34, 3, v240
v_add_u32 v3, v3, v34
s_mul_i32 s24, s{sJ}, 160""")
            for nt in range(5): e.vmem(f"buffer_store_dwordx2 {V(24+2*nt,2)}, v3, {OUT}, s24 offen offset:{32*nt}")
            return
        e(f"""s_mul_i32 s24, s62, 20480
s_add_u32 s24, s24, {XF[k]}
s_lshl_b32 s25, s{sJ}, 11
s_add_u32 s25, s25, s24
s_lshr_b32 s26, s{sJ}, 1
s_lshl_b32 s26, s26, 10
s_and_b32 s27, s{sJ}, 1
s_lshl_b32 s27, s27, 9
s_add_u32 s26, s26, s27
s_add_u32 s26, s26, 16384
s_add_u32 s26, s26, s24""")
        g.xst(f"buffer_store_dwordx4 v[24:27], v1, {WS}, s25 offen")
        g.xst(f"buffer_store_dwordx4 v[28:31], v1, {WS}, s25 offen offset:1024")
        g.xst(f"buffer_store_dwordx2 v[32:33], v2, {WS}, s26 offen")
        e(f"v_pk_mul_f32 v[36:37], {V(R0,2)}, {V(R0,2)}\nv_pk_add_f32 v[34:35], {V(R0,2)}, {V(R0+2,2)}\nv_pk_fma_f32 v[36:37], {V(R0+2,2)}, {V(R0+2,2)}, v[36:37]")
        for i in range(2,10): e(f"v_pk_add_f32 v[34:35], v[34:35], {V(R0+2*i,2)}\nv_pk_fma_f32 v[36:37], {V(R0+2*i,2)}, {V(R0+2*i,2)}, v[36:37]")
        e("""v_add_f32 v34, v34, v35
v_add_f32 v35, v36, v37
v_mov_b32 v36, v34
v_mov_b32 v37, v35
v_permlane32_swap_b32 v34, v36
v_permlane32_swap_b32 v35, v37
v_add_f32 v34, v34, v36
v_add_f32 v35, v35, v37
v_mov_b32 v36, v34
v_mov_b32 v37, v35
v_permlane16_swap_b32 v34, v36
v_permlane16_swap_b32 v35, v37
v_add_f32 v34, v34, v36
v_add_f32 v35, v35, v37""")
        e(f"s_lshl_b32 s24, s60, 9\ns_lshl_b32 s25, s{sW}, 7\ns_add_u32 s24, s24, s25\ns_add_u32 s24, s24, {ST[k]}\ns_mov_b64 exec, 0xffff")
        g.xst(f"buffer_store_dwordx2 v[34:35], v2, {WS}, s24 offen"); e("s_mov_b64 exec, -1")
    def accreg(g,mm,nt): return V(24+20*mm+4*nt,4) if mm<3 else V(R0+4*nt,4)
    def wo(g,L):
        e=g.e; W=g.w
        e(f"s_mul_i32 s45, s62, 20480\ns_add_u32 s45, s45, {OB[L]}\ns_add_u32 s46, s45, 16384")
        g.poll(5*L+2,236)
        g.stamp(8+12*L)
        OF=lambda p: 84+4*p
        for p in range(16):
            if p and p%4==0: e("s_add_u32 s45, s45, 4096")
            e.vmem(f"buffer_load_dwordx4 {V(OF(p),4)}, v1, {WS}, s45 offen offset:{1024*(p%4)}{g.LS}",("o",p))
        for x in range(4):
            e.vmem(f"buffer_load_dwordx2 {V(OF(16+x),2)}, v2, {WS}, s46 offen offset:{1024*x}{g.LS}")
            e.vmem(f"buffer_load_dwordx2 {V(OF(16+x)+2,2)}, v2, {WS}, s46 offen offset:{1024*x+512}{g.LS}",("o",16+x))
        seq=[]
        for p in range(20):
            wv,st=(p>>2,p&3) if p<16 else (p-16,4)
            for nt in range(5): seq.append((p,nt,wv*25600+(st*5+nt)*1024))
        NR=8
        def rd(i):
            p,nt,ad=seq[i]; b,o=("v1",ad) if ad<61440 else ("v238",ad-61440)
            e.ds(f"ds_read_b128 {V(24+4*(i%NR),4)}, {b} offset:{o}",("wl",i))
        for i in range(NR-1): rd(i)
        for i,(p,nt,ad) in enumerate(seq):
            if i+NR-1<len(seq): rd(i+NR-1)
            e.wvm(("o",p)); e.wlg(("wl",i)); d=V(R0+4*nt,4)
            e(f"{MF} {d}, {V(24+4*(i%NR),4)}, {V(OF(p),4)}, {d}")
            if g.o.get("pfw",0) and i%g.o.get("pfw",0)==0: W.issue(1)
        g.stamp("wo_mm")
        g.reduce_epi(L,2*L+1,False,red=False)
        g.stamp("wo_red")
        g.publish(5*L+3,pf=g.o.get("pfx",8))
    def push_w2(g,L,n0,n1,fixed):
        it=[]
        for k in range(n0,n1):
            t=(L,"W2",k); it.append((t,66,k))
            if t in g.maps: g.w.fixed[t]=g.maps[t]
        g.w.push(it)
    def ffn1(g,L):
        e=g.e
        g.stamp("wo_pub")
        g.poll(5*L+3,236)
        g.stamp(9+12*L)
        e(f"s_mul_i32 s24, s{sW}, 14\ns_cmp_eq_u32 s{sW}, 3\ns_cselect_b32 s24, 41, s24\ns_mov_b32 s67, s24\ns_mul_i32 s25, s68, 54\ns_add_u32 s24, s24, s25\ns_mul_i32 s24, s24, 5120\ns_add_u32 s66, s24, {W_2}")
        g.w.cursor(66)
        NW2=g.NW2
        aH=(56,72); cS=(176,180); bB=(184,188)
        def ld_cb(ps):
            e(f"s_add_u32 s24, s63, {ps}\ns_min_u32 s24, s24, 53\ns_lshl_b32 s25, s24, 6\ns_lshl_b32 s24, s24, 7\ns_add_u32 s24, s24, {CS_1}\nv_lshlrev_b32 v3, 4, v240\nv_lshlrev_b32 v228, 3, v240")
            for t in range(2):
                e.vmem(f"buffer_load_dwordx4 {V(cS[t]+16*ps,4)}, v3, {WS}, s24 offen offset:{64*t}",("cb",ps))
                e.vmem(f"buffer_load_dwordx2 {V(bB[t]+16*ps,2)}, v228, {B1}, s25 offen offset:{32*t}",("cb",ps))
        def one_pass(ps,pf):
            W=g.w
            e.wvm(("cb",ps))
            for t in range(2):
                b=bB[t]+16*ps
                e(f"v_and_b32 v{b+3}, 0xffff0000, v{b+1}\nv_lshlrev_b32 v{b+2}, 16, v{b+1}\nv_and_b32 v{b+1}, 0xffff0000, v{b}\nv_lshlrev_b32 v{b}, 16, v{b}")
            g.gemm_x([(aH[t],False,(lambda p,t=t:(L,"W1",ps,2*p+t))) for t in range(2)],pf,chunks=(ps==0))
            if ps==0: g.load_stats(False)
            e(f"s_add_u32 s24, s63, {ps}\ns_lshl_b32 s24, s24, 10\ns_mul_i32 s25, s61, 55296\ns_add_u32 s24, s24, s25\ns_add_u32 s24, s24, {HB[L]}")
            for m in range(4):
                for t in range(2):
                    a=aH[t]+4*m; b=bB[t]+16*ps
                    g.norm(aH[t],m,cS[t]+16*ps,False,mul=False)
                    pr,o=g.bc(140+m)
                    for h in range(2): e(f"v_pk_fma_f32 {V(a+2*h,2)}, {V(a+2*h,2)}, {pr}, {V(b+2*h,2)} op_sel:[0,{o},0] op_sel_hi:[1,{o},1]")
                    for r in range(4): e(f"v_max_f32 v{a+r}, 0, v{a+r}")
                    for h in range(2): e(f"v_pk_mul_f32 {V(a+2*h,2)}, {V(a+2*h,2)}, {V(a+2*h,2)}")
                    T=24+4*m+2*t
                    e(f"v_cvt_pk_bf16_f32 v{T}, v{a}, v{a+1}\nv_cvt_pk_bf16_f32 v{T+1}, v{a+2}, v{a+3}")
                g.xst(f"buffer_store_dwordx4 {V(24+4*m,4)}, v1, {WS}, s24 offen")
                if m<3: e("s_add_u32 s24, s24, 55296")
        ld_cb(0); ld_cb(1)
        g.stage_x(XF[2*L+1],ST[2*L+1])
        g.stamp(10+12*L)
        def path(np_):
            def fn():
                W=g.w

                for ps in range(np_,2):
                    W.q=[t for t in W.q if t[0][:3]!=(L,"W1",ps)]
                    for k in range(40):
                        if (L,"W1",ps,k) in W.slot: W.rel((L,"W1",ps,k))
                g.push_w2(L,0,NW2,16)
                if np_==0:
                    for k in range(4): g.chunk(k)
                for ps in range(np_):
                    one_pass(ps,lambda p,ps=ps:(g.o.get("pf1a",3) if ps==0 else (g.o.get("pf1b",3) if p<g.o.get("pf1c",14) else 0))); g.stamp(f"f1_p{ps}")
                g.f1_tail(L,NW2)
            return fn
        g.fork([(f"s_cmp_lt_u32 s{sW}, 3",path(2)),(f"s_cmp_lt_u32 s{sJ}, 6",path(1)),(None,path(0))])
        g.stamp("f1_pub")
    def pt(g,soff):
        g.e.vmem(f"buffer_load_dword v216, v217, {WS}, {soff} offen"+(" sc1" if g.o.get("ptsc") else ""),"pt")
    def pt_kv(g,L):
        e=g.e
        e(f"v_lshlrev_b32 v217, 7, v0\ns_lshl_b32 s24, s60, 14\ns_lshl_b32 s25, s{sW}, 12\ns_add_u32 s24, s24, s25\ns_add_u32 s24, s24, {KBUF[L]}\ns_mov_b32 exec_hi, 0")
        g.pt("s24")
        e(f"s_mul_i32 s24, s60, 10240\ns_mul_i32 s25, s{sW}, 2560\ns_add_u32 s24, s24, s25\ns_add_u32 s24, s24, {VBUF[L]}\ns_mov_b64 exec, 0xfffff")
        g.pt("s24"); e("s_mov_b64 exec, -1")
    def pt_x(g,L):
        e=g.e
        e(f"""v_lshlrev_b32 v217, 7, v0
s_lshl_b32 s24, s{sJ}, 11
s_lshr_b32 s25, s{sJ}, 1
s_lshl_b32 s25, s25, 10
s_and_b32 s26, s{sJ}, 1
s_lshl_b32 s26, s26, 9
s_add_u32 s25, s25, s26
s_add_u32 s25, s25, {16384-2048}
v_cmp_gt_u32 vcc, 16, v0
v_mov_b32 v216, s25
v_mov_b32 v3, s24
v_cndmask_b32 v216, v216, v3, vcc
v_add_u32 v217, v217, v216
s_mov_b64 exec, 0xfffff""")
        bases=[QB]
        for b in bases:
            e(f"s_mul_i32 s24, s62, 20480\ns_add_u32 s24, s24, {b}"); g.pt("s24")
        e("s_mov_b64 exec, 1\nv_mov_b32 v217, 0")
        for b in [ST[2*L+1]]+([ST[2*L+2]] if L==0 else []):
            e(f"s_lshl_b32 s24, s60, 9\ns_lshl_b32 s25, s{sW}, 7\ns_add_u32 s24, s24, s25\ns_add_u32 s24, s24, {b}"); g.pt("s24")
        e("s_mov_b64 exec, -1")
    def pt_h(g,L):
        e=g.e; sk=e.lab("PH")
        e(f"""v_lshrrev_b32 v217, 3, v0
v_and_b32 v216, 3, v217
v_lshrrev_b32 v217, 2, v217
s_mov_b32 s24, 55296
v_mul_lo_u32 v216, v216, s24
v_lshlrev_b32 v217, 10, v217
v_add_u32 v217, v217, v216
v_and_b32 v216, 7, v0
v_lshlrev_b32 v216, 7, v216
v_add_u32 v217, v217, v216
s_lshl_b32 s24, s63, 10
s_mul_i32 s25, s61, 55296
s_add_u32 s24, s24, s25
s_add_u32 s24, s24, {HB[L]}
s_cmp_lt_u32 s{sW}, 3
s_cselect_b32 exec_hi, -1, 0
s_cmp_eq_u32 s{sW}, 3
s_cselect_b32 s25, s{sJ}, 0
s_cmp_ge_u32 s25, 6
s_cbranch_scc1 {sk}""")
        vm0=e.vm.copy(); g.pt("s24"); e.vm.merge(vm0)
        e(f"{sk}:\ns_mov_b64 exec, -1")
    def f1_tail(g,L,NW2):
        W=g.w
        g.publish(5*L+4,pf=len(W.q))
        while W.q: assert W.issue(1)==1
        for t_,sl in W.slot.items(): g.maps.setdefault(t_,sl)
    def ffn2(g,L):
        e=g.e; W=g.w; last=(L==1)
        for mm in range(4):
            e(f"s_add_u32 s24, s{sW}, {1+mm}\ns_and_b32 s24, s24, 3\ns_add_u32 s24, s24, s61\ns_mul_i32 s24, s24, 54\ns_add_u32 s24, s24, s67\ns_lshl_b32 s24, s24, 10\ns_add_u32 s{45+mm}, s24, {HB[L]}")
            W.cursor(45+mm)
        e(f"s_mul_i32 s24, s{sJ}, 160\nv_lshlrev_b32 v3, 3, v240")
        for nt in range(5): e.vmem(f"buffer_load_dwordx2 {V(84+2*nt,2)}, v3, {B2}, s24 offen offset:{32*nt}","b2")
        e.wvm("b2")
        for i in range(10):
            e(f"v_lshlrev_b32 v94, 16, v{84+i}\nv_and_b32 v95, 0xffff0000, v{84+i}\nv_pk_add_f32 {V(R0+2*i,2)}, {V(R0+2*i,2)}, v[94:95]")
        g.poll(5*L+4,236)
        g.stamp(11+12*L)
        it=[]
        for st in range(14):
            for mm in range(4): it.append(((L,"h",st,mm),45+mm,st,g.LS))
            for nt in range(5):
                k=st*5+nt
                if k>=g.NW2: it.append(((L,"W2",k),66,k))
        W.push(it)
        W.issue(g.o.get("pfh",12))
        for st in range(14):
            if st==13:
                for mm in range(4): W.use((L,"h",st,mm))
                for nt in range(5): W.use((L,"W2",st*5+nt))
                sk=e.lab("SK"); e(f"s_cmp_ge_u32 s{sW}, 2\ns_cbranch_scc1 {sk}")
            for nt in range(5):
                a=W.use((L,"W2",st*5+nt))
                for mm in range(4):
                    b=W.use((L,"h",st,mm)); d=g.accreg(mm,nt)
                    e(f"{MF} {d}, {a}, {b}, {d if (st or mm==3) else '0'}")
                    if mm==1 and st<13: W.issue(1)
                W.rel((L,"W2",st*5+nt))
                if st<13: W.issue(1)
            for mm in range(4): W.rel((L,"h",st,mm))
            if st==13: e(f"s_nop 7\n{sk}:")
        g.stamp("f2_mm")
        if not last:
            g.qkv_cursors(); g.push_kv(L+1)
        W.issue(g.o.get("pf2",16))
        g.reduce_epi(L,2,last)
        g.stamp("f2_red")
        if not last: g.publish(5*L+5,pf=g.o.get("pf3",16))
def gen_main(name,opts):
    g=G(opts); e=g.e; upto=opts.get("upto",99)
    g.prologue(name)
    g.stamp(0)
    g.qkv_cursors(); g.push_kv(0)
    n=0
    for L in range(2):
        for ph,st in ((g.qkv,5),(g.attention,7),(g.wo,None),(g.ffn1,None),(g.ffn2,12)):
            if n>=upto: break
            g.curL=L; ph(L); n+=1
            if st is not None: g.stamp(st+12*L)
    e("s_waitcnt vmcnt(0)\nM_END:\ns_endpgm")
    if opts.get("fine") is not None: print("STAMPS",g.names)
    return fix_hazards(e.L)
```

```python
from emit import *
from lay import *
import copy
MF="v_mfma_f32_16x16x32_bf16"
WS="s[4:7]"; OUT="s[8:11]"; B1="s[12:15]"; B2="s[16:19]"
sC,sJ,sW=20,21,22
sFL=23
sT=[24,25,26,27,28,29,30,31]
R0=4
LDS_ST=102400; LDS_QX=103424; LDS_RED=0; OEX=107520-61440
class WQ:
    def __init__(s,e): s.e=e; s.free=list(range(64)); s.q=[]; s.slot={}; s.cur={}; s.fixed={}
    def copy(s,e):
        c=WQ(e); c.free=list(s.free); c.q=list(s.q); c.slot=dict(s.slot); c.cur=dict(s.cur); c.fixed=dict(s.fixed); return c
    def push(s,items): s.q+=items
    def cursor(s,sg): s.cur[sg]=0
    def issue(s,n=1,mod=""):
        k=0
        while k<n and s.q and s.free:
            it=s.q[0]; tag,sg,idx=it[:3]; m2=it[3] if len(it)>3 else mod
            if tag in s.fixed:
                if s.fixed[tag] not in s.free: break
                sl=s.fixed[tag]; s.free.remove(sl)
            else:
                res=set(s.fixed[t[0]] for t in s.q if t[0] in s.fixed)
                cand=[x for x in s.free if x not in res] or s.free
                sl=cand[0]; s.free.remove(sl)
            s.q.pop(0); s.slot[tag]=sl
            while s.cur[sg]<idx//4: s.e(f"s_add_u32 s{sg}, s{sg}, 4096"); s.cur[sg]+=1
            assert s.cur[sg]==idx//4,(tag,sg,idx,s.cur[sg])
            o=(idx%4)*1024
            s.e.vmem(f"buffer_load_dwordx4 {A(4*sl,4)}, v1, {WS}, s{sg} offen"+(f" offset:{o}" if o else "")+m2,tag); k+=1
        return k
    def ensure(s,tag):
        while tag not in s.slot:
            assert s.q and s.free,("cannot ensure",tag,len(s.q),len(s.free))
            assert s.issue(1)==1,("stuck",tag,s.q[0])
    def use(s,tag):
        s.ensure(tag); s.e.wvm(tag); return A(4*s.slot[tag],4)
    def rel(s,tag): s.free.append(s.slot.pop(tag))
    def take(s,tag): sl=s.free.pop(0); s.slot[tag]=sl; return sl
def interleave(e,mains,fill,per=1,lead=0):
    fill=list(fill); n=len(mains)
    for i,m in enumerate(mains):
        m()
        rem=n-i
        k=-(-len(fill)//rem) if rem>0 else len(fill)
        for _ in range(min(k,len(fill))): fill.pop(0)()
    for f in fill: f()
class G:
    def __init__(g,opts):
        opts=dict(opts)
        if opts.get('plain'): opts['xmode']='plain'
        g.LS='' if opts.get('nols') else ' sc1'
        g.o=opts; g.e=E(); g.w=WQ(g.e); g.nst=0; g.maps={}; g.NW2=opts.get('nw2',48); g.SK='' if opts.get('plainkv') else ' sc1';  g.names=[]; g.curL=0
    def stamp(g,i):
        if not g.o.get("prof"): return
        if g.o.get("fine") is not None:
            if isinstance(i,int): i=f"s{i}"
            if g.curL!=g.o["fine"] and i!="s0": return
            if i not in g.names: g.names.append(i)
            i=g.names.index(i)
            assert i<32
        elif not isinstance(i,int): return
        e=g.e
        e("s_memtime s[98:99]"); e.wlg0()
        e(f"v_mov_b32 v255, s98\ns_lshl_b32 s98, s2, 2\ns_add_u32 s98, s98, s{sW}\ns_lshl_b32 s98, s98, 7\ns_add_u32 s98, s98, {(60<<20)+4*i}")
        e("s_mov_b64 exec, 1"); e.vmem(f"buffer_store_dword v255, off, s[100:103], s98".replace("s[100:103]","s[92:95]")); e("s_mov_b64 exec, -1")
    def xst(g,txt,tag=None):
        e=g.e; m=g.o.get('xmode','auto')
        if m=='sc1': return e.vmem(txt+" sc1")
        if m=='plain': return e.vmem(txt)
        a=e.lab("XS"); b=e.lab("XE")
        e(f"s_cmp_eq_u32 s72, 0\ns_cbranch_scc1 {a}")
        e.vmem(txt)
        e(f"s_branch {b}\n{a}:\n{txt} sc1\n{b}:")
    def cpf(g,va,vd,tag):
        e=g.e; l=e.lab("LPC")
        e(f"""s_getpc_b64 s[34:35]
{l}:
s_lshr_b32 s36, s2, 3
s_lshl_b32 s36, s36, 2
s_add_u32 s36, s36, s{sW}
s_lshl_b32 s36, s36, 10
s_min_u32 s36, s36, M_END-{l}-1024
s_add_u32 s34, s34, s36
s_addc_u32 s35, s35, 0
v_mov_b32 v{va+1}, s35
v_add_co_u32 v{va}, vcc, s34, v1
v_addc_co_u32 v{va+1}, vcc, 0, v{va+1}, vcc""")
        e.vmem(f"global_load_dwordx4 {V(vd,4)}, {V(va,2)}, off",tag)
    def publish(g,seq,pf=0,mark=None):
        e=g.e
        if mark is None:
            e.vm.p["__st"]=0
            if pf: g.w.issue(pf)
            e.wvm("__st")
        else:
            assert mark in e.vm.p or True
            if mark in e.vm.p: e.wvm(mark)
        e(f"v_mov_b32 v3, {seq}\ns_mov_b64 exec, 1")
        t=f"buffer_store_dword v3, off, {WS}, s{sFL}"
        if seq%5==1: e.vmem(t+" sc1")
        else: g.xst(t)
        e("s_mov_b64 exec, -1")
    def poll(g,seq,vaddr):
        e=g.e; l=e.lab("PL"); d=e.lab("PD")
        if seq==1 and g.o.get('xmode','auto')=='auto':
            e(f"s_lshl_b32 s25, s{sC}, 5\ns_add_u32 s25, s25, {FLAGS+4096}\nv_and_b32 v217, 7, v0\nv_lshlrev_b32 v217, 2, v217\nv_add_u32 v217, s25, v217")
            e(f"s_mov_b32 s24, {g.o.get('spin',30000)}\n{l}:")
            e(f"buffer_load_dword v3, v{vaddr}, {WS}, 0 offen sc1\nbuffer_load_dword v216, v217, {WS}, 0 offen sc1\ns_waitcnt vmcnt(0)\nv_cmp_eq_u32 vcc, 0, v216\ns_nop 0\nv_cndmask_b32 v3, v3, v216, vcc\nv_cmp_gt_u32 vcc, {seq}, v3\ns_sub_u32 s24, s24, 1\ns_cbranch_scc1 {d}\ns_cbranch_vccnz {l}\n{d}:")
            e(f"v_cmp_eq_u32 vcc, s73, v216\ns_nop 4\ns_cmp_eq_u64 vcc, -1\ns_cselect_b32 s72, 1, 0")
            if g.o.get('dbgsame'): e(f"v_mov_b32 v216, s72\ns_lshl_b32 s25, s2, 2\ns_add_u32 s25, s25, {61<<20}\ns_mov_b64 exec, 1\nbuffer_store_dword v216, off, s[92:95], s25\ns_mov_b64 exec, -1")
            e.vm.clear(); return
        e(f"s_mov_b32 s24, {g.o.get('spin',30000)}\n{l}:")
        e(f"buffer_load_dword v3, v{vaddr}, {WS}, 0 offen sc1\ns_waitcnt vmcnt(0)\nv_cmp_gt_u32 vcc, {seq}, v3\ns_sub_u32 s24, s24, 1\ns_cbranch_scc1 {d}\ns_cbranch_vccnz {l}\n{d}:")
        e.vm.clear()
    def fork(g,paths):
        e=g.e; end=e.lab("FE"); vm0,lg0,w0=e.vm,e.lg,g.w; res=[]; xn0=getattr(g,'xn',0)
        labs=[e.lab("FK") for _ in paths]
        for (c,_),l in zip(paths[:-1],labs): e(c+f"\ns_cbranch_scc1 {l}")
        e(f"s_branch {labs[-1]}")
        for (c,fn),l in zip(paths,labs):
            e.vm=vm0.copy(); e.lg=lg0.copy(); g.w=w0.copy(e); g.xn=xn0
            e(f"{l}:"); fn(); e(f"s_nop 7\ns_branch {end}"); res.append((e.vm,e.lg,g.w))
        e(f"{end}:")
        e.vm,e.lg,g.w=res[0]
        for vm,lg,w in res[1:]:
            e.vm.merge(vm); e.lg.merge(lg)
            assert w.slot==g.w.slot and w.q==g.w.q,(w.slot,g.w.slot,len(w.q),len(g.w.q))
            for k_ in list(g.w.cur):
                if w.cur.get(k_)!=g.w.cur[k_]: del g.w.cur[k_]
        g.w.free=sorted(g.w.free)
    def prologue(g,name):
        e=g.e
        e(f""".globl {name}
.p2align 8
.type {name},@function
{name}:
s_cmp_ge_u32 s2, 256
s_cbranch_scc1 M_END
s_load_dwordx2 s[24:25], s[0:1], 40
s_load_dwordx2 s[26:27], s[0:1], 56
s_load_dwordx2 s[28:29], s[0:1], 64
s_load_dwordx2 s[30:31], s[0:1], 80
v_lshrrev_b32 v1, 6, v0
v_and_b32 v0, 63, v0
s_nop 0
v_readfirstlane_b32 s{sW}, v1
v_lshlrev_b32 v1, 4, v0
v_lshlrev_b32 v2, 3, v0""")
        if g.o.get("xmap"):
            e(f"s_lshr_b32 s{sC}, s2, 3\ns_and_b32 s{sJ}, s2, 7")
        else:
            e(f"s_and_b32 s{sC}, s2, 7\ns_lshl_b32 s{sC}, s{sC}, 2\ns_lshr_b32 s{sJ}, s2, 6\ns_add_u32 s{sC}, s{sC}, s{sJ}\ns_lshr_b32 s{sJ}, s2, 3\ns_and_b32 s{sJ}, s{sJ}, 7")
        e("s_waitcnt lgkmcnt(0)")
        for d,p,sz in ((4,30,WS_USED),(8,28,2048*1280),(12,24,3456),(16,26,1280),(92,30,64<<20)):
            if d==92 and not g.o.get("prof"): continue
            e(f"s_mov_b32 s{d}, s{p}\ns_mov_b32 s{d+1}, s{p+1}\ns_mov_b32 s{d+2}, {sz}\ns_mov_b32 s{d+3}, 0x00020000")
        e(f"""s_mov_b32 s72, 0
s_getreg_b32 s73, hwreg(HW_REG_XCC_ID, 0, 4)
s_add_u32 s73, s73, 1
s_lshl_b32 s24, s{sC}, 5
s_lshl_b32 s25, s{sJ}, 2
s_add_u32 s24, s24, s25
s_add_u32 s24, s24, {FLAGS+4096}
v_mov_b32 v3, s73
s_mov_b64 exec, 1""")
        e.vmem(f"buffer_store_dword v3, off, {WS}, s24 sc1"); e("s_mov_b64 exec, -1")
        e(f"""s_lshl_b32 s24, s{sC}, 7
s_add_u32 s24, s24, {FLAGS}
s_lshl_b32 s25, s{sJ}, 4
s_lshl_b32 s26, s{sW}, 2
s_add_u32 s25, s25, s26
s_add_u32 s{sFL}, s24, s25
v_and_b32 v236, 31, v0
v_lshlrev_b32 v236, 2, v236
v_add_u32 v236, s24, v236
v_lshrrev_b32 v3, 2, v0
v_cmp_gt_u32 vcc, 20, v0
v_cndmask_b32 v3, 0, v3, vcc
v_sub_u32 v237, s{sC}, v3
v_cmp_gt_i32 vcc, 0, v237
v_mov_b32 v3, s{sC}
v_cndmask_b32 v237, v237, v3, vcc
v_lshlrev_b32 v237, 7, v237
v_and_b32 v3, 3, v0
v_lshlrev_b32 v3, 2, v3
v_add_u32 v237, v237, v3
s_lshl_b32 s25, s{sJ}, 4
s_add_u32 s25, s25, {FLAGS}
v_add_u32 v237, s25, v237
v_add_u32 v238, 61440, v1
v_add_u32 v239, 61440, v2
v_lshrrev_b32 v240, 4, v0
v_and_b32 v241, 15, v0
s_mul_i32 s60, s{sC}, 8
s_add_u32 s60, s60, s{sJ}
s_mov_b32 s68, {"0" if g.o.get("fakej") else "s21"}
s_lshl_b32 s61, s{sC}, 2
s_add_u32 s62, s61, s{sW}""")
        e(f"""s_mul_i32 s24, s62, 20480
s_add_u32 s24, s24, {XF[0]}
s_lshl_b32 s25, s{sJ}, 11
s_add_u32 s25, s25, s24
s_lshr_b32 s26, s{sJ}, 1
s_lshl_b32 s26, s26, 10
s_and_b32 s27, s{sJ}, 1
s_lshl_b32 s27, s27, 9
s_add_u32 s26, s26, s27
s_add_u32 s26, s26, 16384
s_add_u32 s26, s26, s24""")
        if g.o.get("cpf",1): g.cpf(36,40,"cpf0")
        if g.o.get("tio",1):
            e("v_lshlrev_b32 v44, 19, v0\ns_mov_b64 exec, 31"); e.vmem(f"buffer_load_dword v45, v44, {OUT}, 0 offen")
            e("s_mov_b64 exec, 1"); e.vmem(f"buffer_load_dword v45, off, {B1}, 0"); e.vmem(f"buffer_load_dword v45, off, {B2}, 0"); e("s_mov_b64 exec, -1")
        e.vmem(f"buffer_load_dwordx4 v[24:27], v1, {WS}, s25 offen","r0")
        e.vmem(f"buffer_load_dwordx4 v[28:31], v1, {WS}, s25 offen offset:1024","r1")
        e.vmem(f"buffer_load_dwordx2 v[32:33], v2, {WS}, s26 offen","r2")
        if g.o.get("pt",2)&8: g.pt_kv(0)
        e.wvm("r2")
        for i in range(10):
            e(f"v_lshlrev_b32 v{R0+2*i}, 16, v{24+i}\nv_and_b32 v{R0+2*i+1}, 0xffff0000, v{24+i}")
    def qkv_cursors(g):
        e=g.e
        e(f"""s_mul_i32 s24, s68, {15*20480}
s_add_u32 s24, s24, {W_QKV}
s_mul_i32 s25, s{sW}, 20480
s_add_u32 s40, s24, s25
s_add_u32 s41, s40, {4*20480}
s_add_u32 s42, s40, {8*20480}
s_add_u32 s43, s40, {12*20480}""")
        for s in (40,41,42,43): g.w.cursor(s)
    def push_kv(g,L):
        it=[]
        for p in range(20): it+=[((L,"K",p),40,p),((L,"V",p),41,p)]
        g.w.push(it)
    def stage_x(g,xb,stb,extra=None):
        e=g.e
        e(f"s_lshl_b32 s26, s60, 9\ns_and_b32 s26, s26, 0xfffff000\ns_lshl_b32 s27, s{sW}, 7\ns_add_u32 s26, s26, s27\ns_add_u32 s26, s26, {stb}")
        e("v_lshrrev_b32 v24, 3, v0\nv_lshlrev_b32 v24, 9, v24\nv_and_b32 v25, 7, v0\nv_lshlrev_b32 v25, 4, v25\nv_add_u32 v24, v24, v25")
        e.vmem(f"buffer_load_dwordx4 v[28:31], v24, {WS}, s26 offen","stat")
        e(f"s_mul_i32 s69, s62, 20480\ns_add_u32 s69, s69, {xb}\ns_mul_i32 s70, s{sW}, 20480")
        g.xn=0
        for p in range(g.o.get("xup",10)):
            g.xdma()
            if extra: extra(p)
        e.wvm("stat")
        for r in range(4): e(f"v_mov_b32 v{32+r}, v{28+r}")
        for r in range(4): e(f"v_permlane32_swap_b32 v{28+r}, v{32+r}")
        for r in range(4): e(f"v_add_f32 v{28+r}, v{28+r}, v{32+r}")
        for r in range(4): e(f"v_mov_b32 v{32+r}, v{28+r}")
        for r in range(4): e(f"v_permlane16_swap_b32 v{28+r}, v{32+r}")
        for r in range(4): e(f"v_add_f32 v{28+r}, v{28+r}, v{32+r}")
        for r in range(4): e(f"v_add_f32_dpp v{28+r}, v{28+r}, v{28+r} row_ror:8 row_mask:0xf bank_mask:0xf")
        e("s_mov_b32 s26, 0xbacccccd\ns_mov_b32 s27, 0x3acccccd")
        e(f"""v_mul_f32 v32, s26, v28
v_mul_f32 v33, s26, v30
v_mul_f32 v34, s27, v29
v_mul_f32 v35, s27, v31
v_fma_f32 v34, -v32, v32, v34
v_fma_f32 v35, -v33, v33, v35
v_max_f32 v34, 0, v34
v_max_f32 v35, 0, v35
v_add_f32 v34, 0x3727c5ac, v34
v_add_f32 v35, 0x3727c5ac, v35
v_rsq_f32 v34, v34
v_rsq_f32 v35, v35
v_and_b32 v24, 7, v0
v_lshlrev_b32 v24, 3, v24
s_lshl_b32 s26, s{sW}, 6
s_add_u32 s26, s26, {LDS_ST}
v_add_u32 v24, s26, v24
s_mov_b64 exec, 0xff""")
        e.ds("ds_write_b64 v24, v[32:33]"); e.ds("ds_write_b64 v24, v[34:35] offset:256"); e("s_mov_b64 exec, -1")
    def xdma(g):
        e=g.e; p=g.xn
        if p>=20: return
        g.xn+=1
        if p and p%4==0: e("s_add_u32 s69, s69, 4096\ns_add_u32 s70, s70, 4096")
        e("s_mov_b32 m0, s70")
        e.vmem(f"buffer_load_dwordx4 v1, {WS}, s69 offen offset:{(p%4)*1024}{g.LS} lds",("xd",p))
    def chunk(g,k):
        e=g.e
        while g.xn<5*k+5: g.xdma()
        e.wvm(("xd",5*k+4))
        if k==0: e.wlg0()
        e("s_barrier")
    def xread(g,p,m,dst):
        e=g.e
        if p<16:
            b,o=("v1",m*20480+p*1024) if m<3 else ("v238",p*1024)
            e.ds(f"ds_read_b128 {V(dst,4)}, {b} offset:{o}",("x",p,m))
        else:
            b,o=("v2",m*20480+p*1024) if m<3 else ("v239",p*1024)
            e.ds(f"ds_read_b64 {V(dst,2)}, {b} offset:{o}")
            e.ds(f"ds_read_b64 {V(dst+2,2)}, {b} offset:{o+512}",("x",p,m))
    def gemm_x(g,tiles,pf,chunks=False):
        e=g.e
        XB=lambda p,m: 24+16*(p&1)+4*m
        if chunks: g.chunk(0)
        for m in range(4): g.xread(0,m,XB(0,m))
        for p in range(20):
            if chunks and p in (4,9,14): g.chunk((p+1)//5)
            mains=[]
            for (acc,sw,tf) in tiles:
                for m in range(4):
                    def mm(acc=acc,sw=sw,tf=tf,m=m,p=p):
                        a=g.w.use(tf(p)); e.wlg(("x",p,m)); x=V(XB(p,m),4); d=V(acc+4*m,4); c=d if p else "0"
                        e(f"{MF} {d}, {x}, {a}, {c}" if sw else f"{MF} {d}, {a}, {x}, {c}")
                        if m==3: g.w.rel(tf(p))
                    mains.append(mm)
            fl=[]
            if p<19:
                for m in range(4): fl.append(lambda m=m,p=p: g.xread(p+1,m,XB(p+1,m)))
            if chunks and p%g.o.get("xev",1)==0: fl.append(g.xdma)
            for _ in range(pf(p)): fl.append(lambda: g.w.issue(1))
            interleave(e,mains,fl)
    def load_stats(g,row):
        e=g.e
        e(f"v_lshlrev_b32 v3, 2, v241\nv_add_u32 v3, {LDS_ST}, v3")
        for m in range(4):
            e.ds(f"ds_read_b32 v{136+m}, v3 offset:{64*m}","s"); e.ds(f"ds_read_b32 v{140+m}, v3 offset:{256+64*m}","s")
        if row:
            e(f"v_lshlrev_b32 v3, 4, v240\nv_add_u32 v3, {LDS_ST}, v3")
            for m in range(4):
                e.ds(f"ds_read_b128 {V(144+4*m,4)}, v3 offset:{64*m}","s"); e.ds(f"ds_read_b128 {V(160+4*m,4)}, v3 offset:{256+64*m}","s")
        e.wlg0()
    def bc(g,r):
        return (V(r&~1,2), r&1)
    def norm(g,acc,m,cs,sw,rs=None,mul=True):
        e=g.e; a=acc+4*m
        for h in range(2):
            d=V(a+2*h,2)
            if sw:
                pr,o=g.bc(cs); e(f"v_pk_fma_f32 {d}, {V(144+4*m+2*h,2)}, {pr}, {d} op_sel:[0,{o},0] op_sel_hi:[1,{o},1]")
            else:
                pr,o=g.bc(136+m); e(f"v_pk_fma_f32 {d}, {V(cs+2*h,2)}, {pr}, {d} op_sel:[0,{o},0] op_sel_hi:[1,{o},1]")
        if not mul: return
        for h in range(2):
            d=V(a+2*h,2)
            if sw: e(f"v_pk_mul_f32 {d}, {d}, {V(160+4*m+2*h,2)}")
            else:
                pr,o=g.bc((rs or 140)+m); e(f"v_pk_mul_f32 {d}, {d}, {pr} op_sel:[0,{o}] op_sel_hi:[1,{o}]")
    def norm_cvt(g,acc,m,cs,dst,sw,rs=None):
        g.norm(acc,m,cs,sw,rs); a=acc+4*m
        g.e(f"v_cvt_pk_bf16_f32 v{dst}, v{a}, v{a+1}\nv_cvt_pk_bf16_f32 v{dst+1}, v{a+2}, v{a+3}")
    def qkv(g,L):
        e=g.e; xb=XF[2*L]; stb=ST[2*L]
        aK,aV,aX,aQ,aQX=56,72,88,104,120
        cK,cQ,cX,cV=176,180,184,188
        def path(wv):
            def fn():
                W=g.w
                hasx=wv<3;
                e(f"s_mul_i32 s24, s{sJ}, 960\ns_lshl_b32 s25, s{sW}, 6\ns_add_u32 s24, s24, s25\ns_add_u32 s24, s24, {CS_QKV}\nv_lshlrev_b32 v3, 4, v240\nv_lshlrev_b32 v192, 2, v241")
                e.vmem(f"buffer_load_dwordx4 {V(cK,4)}, v3, {WS}, s24 offen","cs"); e.vmem(f"buffer_load_dwordx4 {V(cQ,4)}, v3, {WS}, s24 offen offset:512","cs")
                e.vmem(f"buffer_load_dword v{cV}, v192, {WS}, s24 offen offset:256","cs")
                if wv==0 or wv==2: e.vmem(f"buffer_load_dwordx4 {V(cX,4)}, v3, {WS}, s24 offen offset:768","cs")
                if wv==1: e.vmem(f"buffer_load_dword v{cX}, v192, {WS}, s24 offen offset:768","cs")
                rest=W.q; W.q=[]
                if hasx:
                    kv={t[0]:t for t in rest}; it=[]
                    for p in range(20):
                        for n in ("K","V"):
                            if (L,n,p) in kv: it.append(kv[(L,n,p)])
                        it.append(((L,"X",p),43,p))
                    W.push(it)
                else: W.push(rest)
                W.push([((L,"Q",p),42,p) for p in range(20)])
                if L>0:
                    W.issue(g.o.get("pfq",0)); g.poll(5*L,236)
                g.stamp(1+12*L)
                g.stage_x(xb,stb,(lambda p: W.issue(g.o.get("pf0",2))) if L==0 else None)
                g.stamp(2+12*L)
                tiles=[(aK,False,lambda p:(L,"K",p)),(aV,True,lambda p:(L,"V",p))]
                if hasx: tiles.append((aX,wv==1,lambda p:(L,"X",p)))
                g.gemm_x(tiles,lambda p:(3 if hasx else 2) if L==0 else g.o.get("pfK",2),chunks=True)
                g.stamp(3+12*L)
                kvo=g.o.get("kvo",0)
                if kvo: W.issue(g.o.get("kvoq",20))
                g.load_stats(True); e.wvm("cs")
                e(f"s_lshl_b32 s24, s60, 14\ns_add_u32 s24, s24, {KBUF[L]}\ns_lshl_b32 s25, s{sW}, 12\ns_add_u32 s25, s25, s24\ns_mul_i32 s26, s60, 10240\ns_add_u32 s26, s26, {VBUF[L]}\ns_lshl_b32 s27, s{sW}, 11\ns_add_u32 s27, s27, s26\ns_add_u32 s26, s26, 8192")
                T=24
                if wv==2:
                    for m in range(4): e(f"v_mul_f32 v{194+m}, 0x3ea52b5c, v{140+m}")
                if wv in (0,2):
                    for m in range(4):
                        g.norm_cvt(aX,m,cX,T+16+2*m,False,rs=(140 if wv==0 else 194))
                        e.ds(f"ds_write_b64 v239, {V(T+16+2*m,2)} offset:{LDS_QX-61440+512*m+(2048 if wv==0 else 0)}")
                for m in range(4):
                    g.norm_cvt(aV,m,cV,T+24+2*m,True)
                    if m&1: e.vmem(f"buffer_store_dwordx4 {V(T+24+2*m-2,4)}, v1, {WS}, s27 offen offset:{1024*(m>>1)}{g.SK}")
                if wv==1:
                    for m in range(4):
                        g.norm_cvt(aX,m,cX,T+16+2*m,True)
                        if m&1: e.vmem(f"buffer_store_dwordx4 {V(T+16+2*m-2,4)}, v1, {WS}, s26 offen offset:{1024*(m>>1)}{g.SK}")
                for m in range(4):
                    g.norm_cvt(aK,m,cK,T+4*m,False)
                e.wlg0(); e("s_barrier")
                for m in range(4): e.ds(f"ds_read_b64 {V(T+4*m+2,2)}, v239 offset:{LDS_QX-61440+2048+512*m}",("kx",m))
                for m in range(4): e.ds(f"ds_read_b64 {V(202+4*m,2)}, v239 offset:{LDS_QX-61440+512*m}",("qx",m))
                for m in range(4):
                    e.wlg(("kx",m)); e.vmem(f"buffer_store_dwordx4 {V(T+4*m,4)}, v1, {WS}, s25 offen offset:{1024*m}{g.SK}")
                e.wlg0()
                e(f"v_cmp_eq_u32 vcc, s{sW}, v240")
                for m in range(4):
                    for r in range(2): e(f"v_cndmask_b32 v{202+4*m+r}, 0, v{202+4*m+r}, vcc")
                g.stamp("kv_st")
                if not kvo: g.publish(5*L+1,pf=g.o.get("pfkv",20))
                g.stamp(4+12*L)
                tiles=[(aQ,False,lambda p:(L,"Q",p))]
                if kvo:
                    e.vm.p["__kvst"]=0
                    pubp=g.o.get("pubp",16)
                    def pfq(p):
                        if p==pubp: g.publish(5*L+1,mark="__kvst")
                        return g.o.get("pfQ",2)
                    g.gemm_x(tiles,pfq)
                    if pubp>=20: g.publish(5*L+1,mark="__kvst")
                else: g.gemm_x(tiles,lambda p:g.o.get("pfQ",2))
                g.stamp("q_mm")
                e("s_mov_b32 s24, 0x3ea52b5c")
                for m in range(4): e(f"v_mul_f32 v{140+m}, s24, v{140+m}")
                for m in range(4):
                    g.norm_cvt(aQ,m,cQ,200+4*m,False)
                while W.q: assert W.issue(1)==1
                for t_,sl in W.slot.items(): g.maps.setdefault(t_,sl)
            return fn
        g.fork([(f"s_cmp_eq_u32 s{sW}, 0",path(0)),(f"s_cmp_eq_u32 s{sW}, 1",path(1)),(f"s_cmp_eq_u32 s{sW}, 2",path(2)),(None,path(3))])
    def wo_dma(g,L):
        e=g.e
        e(f"s_lshl_b32 s44, s68, 2\ns_add_u32 s44, s44, s{sW}\ns_mul_i32 s44, s44, 25600\ns_add_u32 s44, s44, {W_O}\ns_mul_i32 s70, s{sW}, 25600")
        def one(k):
            if k and k%4==0: e("s_add_u32 s44, s44, 4096\ns_add_u32 s70, s70, 4096")
            e("s_mov_b32 m0, s70")
            e.vmem(f"buffer_load_dwordx4 v1, {WS}, s44 offen offset:{(k%4)*1024} lds",("wod",k))
        return [(lambda k=k: one(k)) for k in range(25)]
    def w1_cursor(g,sg,ps):
        e=g.e
        if ps==0:
            e(f"""s_mul_i32 s63, s{sJ}, 7
s_cmp_eq_u32 s{sJ}, 7
s_cselect_b32 s63, 48, s63
s_lshl_b32 s24, s{sW}, 1
s_add_u32 s63, s63, s24
s_min_u32 s63, s63, 53""")
        if g.o.get("fakej"): e(f"s_lshl_b32 s24, s{sW}, 1\ns_add_u32 s24, s24, {ps}")
        else: e(f"s_add_u32 s24, s63, {ps}\ns_min_u32 s24, s24, 53")
        e(f"s_mul_i32 s24, s24, 40960\ns_add_u32 s{sg}, s24, {W_1}"); g.w.cursor(sg)
    def attention(g,L):
        e=g.e; W=g.w
        NEG="0xf149f2ca"
        S0,P0,OM,OX,VX,MK,QF=24,92,128,132,136,176,200
        e(f"s_mov_b32 s25, {NEG}\nv_lshlrev_b32 v3, 2, v240\nv_mov_b32 v216, s25")
        for d in (4,3,2,1):
            e(f"s_cmp_lt_u32 s{sC}, {d}\ns_cselect_b32 s24, s25, 0")
            for r in range(4): e(f"v_mov_b32 v{MK+8+4*(4-d)+r}, s24")
        for r in range(4):
            e(f"v_add_u32 v217, {r}, v3\nv_cmp_le_u32 vcc, v217, v241\nv_cndmask_b32 v{MK+r}, v216, 0, vcc".replace("v216, 0, vcc","v216, v219, vcc") if False else
              f"v_add_u32 v217, {r}, v3\nv_cmp_gt_u32 vcc, v217, v241\nv_cndmask_b32 v{MK+r}, 0, v216, vcc\nv_cndmask_b32 v{MK+4+r}, v216, v{MK+8+r}, vcc")
        for i in range(40): e(f"v_mov_b32 v{VX+i}, 0x3f803f80")
        for k,d in enumerate((4,3,2,1,0)):
            e(f"""s_sub_u32 s24, s{sC}, {d}
s_cmp_lt_u32 s{sC}, {d}
s_cselect_b32 s24, s{sC}, s24
s_lshl_b32 s24, s24, 3
s_add_u32 s24, s24, s{sJ}
s_lshl_b32 s25, s24, 14
s_lshl_b32 s26, s{sW}, 12
s_add_u32 s25, s25, s26
s_add_u32 s{45+k}, s25, {KBUF[L]}
s_mul_i32 s25, s24, 10240
s_add_u32 s{50+k}, s25, {VBUF[L]}""")
        e(f"s_lshl_b32 s55, s{sW}, 11\nv_add_u32 v218, s55, v1\nv_add_u32 v219, 8192, v1\nv_lshrrev_b32 v3, 2, v241\nv_cmp_eq_u32 s[56:57], s{sW}, v3")
        e(f"s_and_b32 s24, s{sW}, 1\ns_cmp_eq_u32 s24, 1\ns_cselect_b64 s[58:59], -1, 0")
        e(f"s_lshr_b32 s24, s{sW}, 1\ns_lshl_b32 s24, s24, 10\ns_and_b32 s25, s{sW}, 1\ns_lshl_b32 s25, s25, 3\ns_add_u32 s24, s24, s25\nv_add_u32 v229, s24, v238")
        g.poll(5*L+1,237)
        g.stamp(6+12*L)
        def ldK(u):
            sl=W.take((L,"k",u)); o=(u&3)*1024
            e.vmem(f"buffer_load_dwordx4 {A(4*sl,4)}, v1, {WS}, s{45+(u>>2)} offen offset:{o}",(L,"k",u))
        def ldV(pi):
            sl=W.take((L,"v",pi)); o=(pi&1)*1024
            e.vmem(f"buffer_load_dwordx4 {A(4*sl,4)}, v218, {WS}, s{50+(pi>>1)} offen offset:{o}",(L,"v",pi))
        def ldX(pi):
            o=(pi&1)*1024
            e.vmem(f"buffer_load_dwordx4 {V(VX+4*pi,4)}, v219, {WS}, s{50+(pi>>1)} offen offset:{o}",(L,"x",pi))
        e("s_barrier")
        for u in range(17): ldK(u)
        def ldXm(pis):
            e("s_mov_b64 exec, s[56:57]")
            for pi in pis: ldX(pi)
            e("s_mov_b64 exec, -1")
        late=[(lambda pi=pi: ldV(pi)) for pi in range(5)]+[lambda: ldXm(range(5))]+[(lambda pi=pi: ldV(pi)) for pi in range(5,9)]+[lambda: ldXm(range(5,10))]
        late+=[(lambda u=u: ldK(u)) for u in range(17,20)]+[lambda: ldV(9)]
        late+=g.wo_dma(L)
        pto=g.o.get("pt",2)
        if pto&1 and L==0: late.append(lambda: g.pt_x(L))
        if pto&2 and L==0 and g.o.get("pta",2)<0: late.append(lambda: g.pt_h(L))
        if pto&4 and L==0: late.append(lambda: g.pt_kv(1))
        g.w1_cursor(64,0)
        W.push([((L,"W1",0,k),64,k) for k in range(40)])
        g.w1_cursor(65,1)
        W.push([((L,"W1",1,k),65,k) for k in range(40)])
        def cop(i,u):
            if u==i: return V(MK+4,4)
            if u==16+i: return V(MK,4)
            d=4-(u>>2)
            return V(MK+8+4*(4-d),4) if d>0 else "0"
        def qk(i,q):
            u=i+q; e.wvm((L,"k",u))
            e(f"{MF} {V(S0+4*q,4)}, {A(4*W.slot[(L,'k',u)],4)}, {V(QF+4*i,4)}, {cop(i,u)}")
        def pv(i):
            f=[]
            for k in range(9):
                pi=(i>>1)+k
                def a(k=k,pi=pi):
                    e.wvm((L,"v",pi)); e(f"{MF} {V(OM,4)}, {A(4*W.slot[(L,'v',pi)],4)}, {V(P0+4*k,4)}, {V(OM,4) if k else '0'}")
                def b(k=k,pi=pi):
                    e.wvm((L,"x",pi)); e(f"{MF} {V(OX,4)}, {V(VX+4*pi,4)}, {V(P0+4*k,4)}, {V(OX,4) if k else '0'}")
                f+=[a,b]
            return f
        def fin(i):
            e(f"""v_mov_b32 v220, v{OX}
v_mov_b32 v221, v{OX}
v_permlane16_swap_b32 v220, v221
v_cndmask_b32 v220, v221, v220, s[58:59]
v_rcp_f32 v220, v220""")
            for r in range(8): e(f"v_mul_f32 v{OM+r}, v220, v{OM+r}")
            e(f"v_cvt_pk_bf16_f32 v222, v{OM}, v{OM+1}\nv_cvt_pk_bf16_f32 v223, v{OM+2}, v{OM+3}\nv_cvt_pk_bf16_f32 v224, v{OX}, v{OX+1}\nv_cvt_pk_bf16_f32 v225, v{OX+2}, v{OX+3}")
            e.ds(f"ds_write_b64 v229, v[222:223] offset:{OEX+2560*i}")
            e(f"v_cmp_eq_u32 vcc, s{sW}, v240\ns_mov_b64 exec, vcc")
            e.ds(f"ds_write_b64 v239, v[224:225] offset:{OEX+2560*i+2048}"); e("s_mov_b64 exec, -1")
        for q in range(17): qk(0,q)
        g.stamp("a_qk0")
        npf=g.o.get("pfa",3)
        for i in range(4):
            va=[]
            vals=[S0+k for k in range(68)]
            va.append(lambda: e(f"v_max3_f32 v226, v{vals[0]}, v{vals[1]}, v{vals[2]}"))
            va.append(lambda: e(f"v_max3_f32 v228, v{vals[3]}, v{vals[4]}, v{vals[5]}"))
            k=6
            while k<68:
                va.append(lambda k=k: e(f"v_max3_f32 v226, v226, v{vals[k]}, v{vals[k+1]}")); k+=2
                if k<68: va.append(lambda k=k: e(f"v_max3_f32 v228, v228, v{vals[k]}, v{vals[k+1]}")); k+=2
            va.append(lambda: e("v_max_f32 v226, v226, v228\nv_mov_b32 v227, v226\nv_permlane32_swap_b32 v226, v227\nv_max_f32 v226, v226, v227\nv_mov_b32 v227, v226\nv_permlane16_swap_b32 v226, v227\nv_max_f32 v226, v226, v227\nv_mov_b32 v227, v226"))
            for k in range(34): va.append(lambda k=k: e(f"v_pk_add_f32 {V(S0+2*k,2)}, {V(S0+2*k,2)}, v[226:227] neg_lo:[0,1] neg_hi:[0,1]"))
            if i>0:
                m=pv(i-1)
                vi=0
                for mm in m:
                    mm()
                    for _ in range(3):
                        if vi<len(va): va[vi](); vi+=1
                for f in va[vi:]: f()
                fin(i-1)
            else:
                for n_,f in enumerate(va):
                    f()
                    if n_%5==0 and late: late.pop(0)()
            if i%2==0: e(f"v_mov_b32 v{P0+34}, 0\nv_mov_b32 v{P0+35}, 0")
            else: e(f"v_mov_b32 v{P0}, 0\nv_mov_b32 v{P0+1}, 0")
            pend=None
            for q in range(17):
                s=S0+4*q; pp=P0+2*q+(2 if i%2 else 0)
                for r in range(4): e(f"v_exp_f32 v{s+r}, v{s+r}")
                if pend is not None: pend()
                e(f"v_cvt_pk_bf16_f32 v{pp}, v{s}, v{s+1}\nv_cvt_pk_bf16_f32 v{pp+1}, v{s+2}, v{s+3}")
                pend=(lambda q=q: qk(i+1,q)) if i<3 else None
                if late: late.pop(0)()
                elif q%g.o.get("pfa2",2)==1: W.issue(1)
            if pend is not None: pend()
            W.issue(npf)
            if pto&2 and L==0 and g.o.get("pta",2)==i: g.pt_h(L)
            g.stamp(f"a_t{i}")
        while late: late.pop(0)()
        for f in pv(3): f()
        for u in range(20): W.rel((L,"k",u))
        fin(3)
        for pi in range(10): W.rel((L,"v",pi))
        g.stamp("a_fin")
        e(f"""s_mul_i32 s24, s{sW}, 2560
v_add_u32 v3, s24, v238
v_add_u32 v229, s24, v239
s_mul_i32 s24, s62, 20480
s_add_u32 s24, s24, {OB[L]}
s_lshl_b32 s25, s{sJ}, 11
s_add_u32 s25, s25, s24
s_lshr_b32 s26, s{sJ}, 1
s_lshl_b32 s26, s26, 10
s_and_b32 s27, s{sJ}, 1
s_lshl_b32 s27, s27, 9
s_add_u32 s26, s26, s27
s_add_u32 s26, s26, 16384
s_add_u32 s26, s26, s24""")
        e.wvm(("wod",24)); e.wlg0(); e("s_barrier")
        e.ds(f"ds_read_b128 v[24:27], v3 offset:{OEX}","oa"); e.ds(f"ds_read_b128 v[28:31], v3 offset:{OEX+1024}","ob"); e.ds(f"ds_read_b64 v[32:33], v229 offset:{OEX+2048}","oc")
        e.wlg("oa"); g.xst(f"buffer_store_dwordx4 v[24:27], v1, {WS}, s25 offen")
        e.wlg("ob"); g.xst(f"buffer_store_dwordx4 v[28:31], v1, {WS}, s25 offen offset:1024")
        e.wlg("oc"); g.xst(f"buffer_store_dwordx2 v[32:33], v2, {WS}, s26 offen")
        g.publish(5*L+2,pf=g.o.get("pfo",24))
    def reduce_epi(g,L,k,final,red=True,pf=0):
        e=g.e
        if red: g.reduce(pf)
        g.epi(L,k,final)
    def reduce(g,pf):
        e=g.e
        for mm in range(3):
            e(f"s_add_u32 s24, s{sW}, {1+mm}\ns_and_b32 s24, s24, 3\ns_mul_i32 s24, s24, 15360\nv_add_u32 v3, s24, v1")
            for nt in range(5): e.ds(f"ds_write_b128 v3, {V(24+20*mm+4*nt,4)} offset:{mm*5120+nt*1024}")
        e(f"s_mul_i32 s24, s{sW}, 15360\nv_add_u32 v3, s24, v1")
        e.wlg0(); e("s_barrier")
        for mm in range(3):
            for nt in range(5): e.ds(f"ds_read_b128 {V(24+20*mm+4*nt,4)}, v3 offset:{mm*5120+nt*1024}",("r",mm,nt))
        for mm in range(3):
            for nt in range(5):
                e.wlg(("r",mm,nt))
                for h in range(2): e(f"v_pk_add_f32 {V(R0+4*nt+2*h,2)}, {V(R0+4*nt+2*h,2)}, {V(24+20*mm+4*nt+2*h,2)}")
        e.lg.clear()
    def epi(g,L,k,final):
        e=g.e
        for i in range(10): e(f"v_cvt_pk_bf16_f32 v{24+i}, v{R0+2*i}, v{R0+2*i+1}")
        if final:
            e(f"""s_lshl_b32 s24, s62, 4
v_add_u32 v3, s24, v241
v_mul_u32_u24 v3, 1280, v3
v_lshlrev_b32 v34, 3, v240
v_add_u32 v3, v3, v34
s_mul_i32 s24, s{sJ}, 160""")
            for nt in range(5): e.vmem(f"buffer_store_dwordx2 {V(24+2*nt,2)}, v3, {OUT}, s24 offen offset:{32*nt}")
            return
        e(f"""s_mul_i32 s24, s62, 20480
s_add_u32 s24, s24, {XF[k]}
s_lshl_b32 s25, s{sJ}, 11
s_add_u32 s25, s25, s24
s_lshr_b32 s26, s{sJ}, 1
s_lshl_b32 s26, s26, 10
s_and_b32 s27, s{sJ}, 1
s_lshl_b32 s27, s27, 9
s_add_u32 s26, s26, s27
s_add_u32 s26, s26, 16384
s_add_u32 s26, s26, s24""")
        g.xst(f"buffer_store_dwordx4 v[24:27], v1, {WS}, s25 offen")
        g.xst(f"buffer_store_dwordx4 v[28:31], v1, {WS}, s25 offen offset:1024")
        g.xst(f"buffer_store_dwordx2 v[32:33], v2, {WS}, s26 offen")
        e(f"v_pk_mul_f32 v[36:37], {V(R0,2)}, {V(R0,2)}\nv_pk_add_f32 v[34:35], {V(R0,2)}, {V(R0+2,2)}\nv_pk_fma_f32 v[36:37], {V(R0+2,2)}, {V(R0+2,2)}, v[36:37]")
        for i in range(2,10): e(f"v_pk_add_f32 v[34:35], v[34:35], {V(R0+2*i,2)}\nv_pk_fma_f32 v[36:37], {V(R0+2*i,2)}, {V(R0+2*i,2)}, v[36:37]")
        e("""v_add_f32 v34, v34, v35
v_add_f32 v35, v36, v37
v_mov_b32 v36, v34
v_mov_b32 v37, v35
v_permlane32_swap_b32 v34, v36
v_permlane32_swap_b32 v35, v37
v_add_f32 v34, v34, v36
v_add_f32 v35, v35, v37
v_mov_b32 v36, v34
v_mov_b32 v37, v35
v_permlane16_swap_b32 v34, v36
v_permlane16_swap_b32 v35, v37
v_add_f32 v34, v34, v36
v_add_f32 v35, v35, v37""")
        e(f"s_lshl_b32 s24, s60, 9\ns_lshl_b32 s25, s{sW}, 7\ns_add_u32 s24, s24, s25\ns_add_u32 s24, s24, {ST[k]}\ns_mov_b64 exec, 0xffff")
        g.xst(f"buffer_store_dwordx2 v[34:35], v2, {WS}, s24 offen"); e("s_mov_b64 exec, -1")
    def accreg(g,mm,nt): return V(24+20*mm+4*nt,4) if mm<3 else V(R0+4*nt,4)
    def wo(g,L):
        e=g.e; W=g.w
        e(f"s_mul_i32 s45, s62, 20480\ns_add_u32 s45, s45, {OB[L]}\ns_add_u32 s46, s45, 16384")
        g.poll(5*L+2,236)
        g.stamp(8+12*L)
        OF=lambda p: 84+4*p
        for p in range(16):
            if p and p%4==0: e("s_add_u32 s45, s45, 4096")
            e.vmem(f"buffer_load_dwordx4 {V(OF(p),4)}, v1, {WS}, s45 offen offset:{1024*(p%4)}{g.LS}",("o",p))
        for x in range(4):
            e.vmem(f"buffer_load_dwordx2 {V(OF(16+x),2)}, v2, {WS}, s46 offen offset:{1024*x}{g.LS}")
            e.vmem(f"buffer_load_dwordx2 {V(OF(16+x)+2,2)}, v2, {WS}, s46 offen offset:{1024*x+512}{g.LS}",("o",16+x))
        seq=[]
        for p in range(20):
            wv,st=(p>>2,p&3) if p<16 else (p-16,4)
            for nt in range(5): seq.append((p,nt,wv*25600+(st*5+nt)*1024))
        NR=8
        def rd(i):
            p,nt,ad=seq[i]; b,o=("v1",ad) if ad<61440 else ("v238",ad-61440)
            e.ds(f"ds_read_b128 {V(24+4*(i%NR),4)}, {b} offset:{o}",("wl",i))
        for i in range(NR-1): rd(i)
        for i,(p,nt,ad) in enumerate(seq):
            if i+NR-1<len(seq): rd(i+NR-1)
            e.wvm(("o",p)); e.wlg(("wl",i)); d=V(R0+4*nt,4)
            e(f"{MF} {d}, {V(24+4*(i%NR),4)}, {V(OF(p),4)}, {d}")
            if g.o.get("pfw",0) and i%g.o.get("pfw",0)==0: W.issue(1)
        g.stamp("wo_mm")
        g.reduce_epi(L,2*L+1,False,red=False)
        g.stamp("wo_red")
        g.publish(5*L+3,pf=g.o.get("pfx",8))
    def push_w2(g,L,n0,n1,fixed):
        it=[]
        for k in range(n0,n1):
            t=(L,"W2",k); it.append((t,66,k))
            if t in g.maps: g.w.fixed[t]=g.maps[t]
        g.w.push(it)
    def ffn1(g,L):
        e=g.e
        g.stamp("wo_pub")
        g.poll(5*L+3,236)
        g.stamp(9+12*L)
        e(f"s_mul_i32 s24, s{sW}, 14\ns_cmp_eq_u32 s{sW}, 3\ns_cselect_b32 s24, 41, s24\ns_mov_b32 s67, s24\ns_mul_i32 s25, s68, 54\ns_add_u32 s24, s24, s25\ns_mul_i32 s24, s24, 5120\ns_add_u32 s66, s24, {W_2}")
        g.w.cursor(66)
        NW2=g.NW2
        aH=(56,72); cS=(176,180); bB=(184,188)
        def ld_cb(ps):
            e(f"s_add_u32 s24, s63, {ps}\ns_min_u32 s24, s24, 53\ns_lshl_b32 s25, s24, 6\ns_lshl_b32 s24, s24, 7\ns_add_u32 s24, s24, {CS_1}\nv_lshlrev_b32 v3, 4, v240\nv_lshlrev_b32 v228, 3, v240")
            for t in range(2):
                e.vmem(f"buffer_load_dwordx4 {V(cS[t]+16*ps,4)}, v3, {WS}, s24 offen offset:{64*t}",("cb",ps))
                e.vmem(f"buffer_load_dwordx2 {V(bB[t]+16*ps,2)}, v228, {B1}, s25 offen offset:{32*t}",("cb",ps))
        def one_pass(ps,pf):
            W=g.w
            e.wvm(("cb",ps))
            for t in range(2):
                b=bB[t]+16*ps
                e(f"v_and_b32 v{b+3}, 0xffff0000, v{b+1}\nv_lshlrev_b32 v{b+2}, 16, v{b+1}\nv_and_b32 v{b+1}, 0xffff0000, v{b}\nv_lshlrev_b32 v{b}, 16, v{b}")
            g.gemm_x([(aH[t],False,(lambda p,t=t:(L,"W1",ps,2*p+t))) for t in range(2)],pf,chunks=(ps==0))
            if ps==0: g.load_stats(False)
            e(f"s_add_u32 s24, s63, {ps}\ns_lshl_b32 s24, s24, 10\ns_mul_i32 s25, s61, 55296\ns_add_u32 s24, s24, s25\ns_add_u32 s24, s24, {HB[L]}")
            for m in range(4):
                for t in range(2):
                    a=aH[t]+4*m; b=bB[t]+16*ps
                    g.norm(aH[t],m,cS[t]+16*ps,False,mul=False)
                    pr,o=g.bc(140+m)
                    for h in range(2): e(f"v_pk_fma_f32 {V(a+2*h,2)}, {V(a+2*h,2)}, {pr}, {V(b+2*h,2)} op_sel:[0,{o},0] op_sel_hi:[1,{o},1]")
                    for r in range(4): e(f"v_max_f32 v{a+r}, 0, v{a+r}")
                    for h in range(2): e(f"v_pk_mul_f32 {V(a+2*h,2)}, {V(a+2*h,2)}, {V(a+2*h,2)}")
                    T=24+4*m+2*t
                    e(f"v_cvt_pk_bf16_f32 v{T}, v{a}, v{a+1}\nv_cvt_pk_bf16_f32 v{T+1}, v{a+2}, v{a+3}")
                g.xst(f"buffer_store_dwordx4 {V(24+4*m,4)}, v1, {WS}, s24 offen")
                if m<3: e("s_add_u32 s24, s24, 55296")
        ld_cb(0); ld_cb(1)
        g.stage_x(XF[2*L+1],ST[2*L+1])
        g.stamp(10+12*L)
        def path(np_):
            def fn():
                W=g.w

                for ps in range(np_,2):
                    W.q=[t for t in W.q if t[0][:3]!=(L,"W1",ps)]
                    for k in range(40):
                        if (L,"W1",ps,k) in W.slot: W.rel((L,"W1",ps,k))
                g.push_w2(L,0,NW2,16)
                if np_==0:
                    for k in range(4): g.chunk(k)
                for ps in range(np_):
                    one_pass(ps,lambda p,ps=ps:(g.o.get("pf1a",3) if ps==0 else (g.o.get("pf1b",3) if p<g.o.get("pf1c",14) else 0))); g.stamp(f"f1_p{ps}")
                g.f1_tail(L,NW2)
            return fn
        g.fork([(f"s_cmp_lt_u32 s{sW}, 3",path(2)),(f"s_cmp_lt_u32 s{sJ}, 6",path(1)),(None,path(0))])
        g.stamp("f1_pub")
    def pt(g,soff):
        g.e.vmem(f"buffer_load_dword v216, v217, {WS}, {soff} offen"+(" sc1" if g.o.get("ptsc") else ""),"pt")
    def pt_kv(g,L):
        e=g.e
        e(f"v_lshlrev_b32 v217, 7, v0\ns_lshl_b32 s24, s60, 14\ns_lshl_b32 s25, s{sW}, 12\ns_add_u32 s24, s24, s25\ns_add_u32 s24, s24, {KBUF[L]}\ns_mov_b32 exec_hi, 0")
        g.pt("s24")
        e(f"s_mul_i32 s24, s60, 10240\ns_mul_i32 s25, s{sW}, 2560\ns_add_u32 s24, s24, s25\ns_add_u32 s24, s24, {VBUF[L]}\ns_mov_b64 exec, 0xfffff")
        g.pt("s24"); e("s_mov_b64 exec, -1")
    def pt_x(g,L):
        e=g.e
        e(f"""v_lshlrev_b32 v217, 7, v0
s_lshl_b32 s24, s{sJ}, 11
s_lshr_b32 s25, s{sJ}, 1
s_lshl_b32 s25, s25, 10
s_and_b32 s26, s{sJ}, 1
s_lshl_b32 s26, s26, 9
s_add_u32 s25, s25, s26
s_add_u32 s25, s25, {16384-2048}
v_cmp_gt_u32 vcc, 16, v0
v_mov_b32 v216, s25
v_mov_b32 v3, s24
v_cndmask_b32 v216, v216, v3, vcc
v_add_u32 v217, v217, v216
s_mov_b64 exec, 0xfffff""")
        bases=[QB]
        for b in bases:
            e(f"s_mul_i32 s24, s62, 20480\ns_add_u32 s24, s24, {b}"); g.pt("s24")
        e("s_mov_b64 exec, 1\nv_mov_b32 v217, 0")
        for b in [ST[2*L+1]]+([ST[2*L+2]] if L==0 else []):
            e(f"s_lshl_b32 s24, s60, 9\ns_lshl_b32 s25, s{sW}, 7\ns_add_u32 s24, s24, s25\ns_add_u32 s24, s24, {b}"); g.pt("s24")
        e("s_mov_b64 exec, -1")
    def pt_h(g,L):
        e=g.e; sk=e.lab("PH")
        e(f"""v_lshrrev_b32 v217, 3, v0
v_and_b32 v216, 3, v217
v_lshrrev_b32 v217, 2, v217
s_mov_b32 s24, 55296
v_mul_lo_u32 v216, v216, s24
v_lshlrev_b32 v217, 10, v217
v_add_u32 v217, v217, v216
v_and_b32 v216, 7, v0
v_lshlrev_b32 v216, 7, v216
v_add_u32 v217, v217, v216
s_lshl_b32 s24, s63, 10
s_mul_i32 s25, s61, 55296
s_add_u32 s24, s24, s25
s_add_u32 s24, s24, {HB[L]}
s_cmp_lt_u32 s{sW}, 3
s_cselect_b32 exec_hi, -1, 0
s_cmp_eq_u32 s{sW}, 3
s_cselect_b32 s25, s{sJ}, 0
s_cmp_ge_u32 s25, 6
s_cbranch_scc1 {sk}""")
        vm0=e.vm.copy(); g.pt("s24"); e.vm.merge(vm0)
        e(f"{sk}:\ns_mov_b64 exec, -1")
    def f1_tail(g,L,NW2):
        W=g.w
        g.publish(5*L+4,pf=len(W.q))
        while W.q: assert W.issue(1)==1
        for t_,sl in W.slot.items(): g.maps.setdefault(t_,sl)
    def ffn2(g,L):
        e=g.e; W=g.w; last=(L==1)
        for mm in range(4):
            e(f"s_add_u32 s24, s{sW}, {1+mm}\ns_and_b32 s24, s24, 3\ns_add_u32 s24, s24, s61\ns_mul_i32 s24, s24, 54\ns_add_u32 s24, s24, s67\ns_lshl_b32 s24, s24, 10\ns_add_u32 s{45+mm}, s24, {HB[L]}")
            W.cursor(45+mm)
        e(f"s_mul_i32 s24, s{sJ}, 160\nv_lshlrev_b32 v3, 3, v240")
        for nt in range(5): e.vmem(f"buffer_load_dwordx2 {V(84+2*nt,2)}, v3, {B2}, s24 offen offset:{32*nt}","b2")
        e.wvm("b2")
        for i in range(10):
            e(f"v_lshlrev_b32 v94, 16, v{84+i}\nv_and_b32 v95, 0xffff0000, v{84+i}\nv_pk_add_f32 {V(R0+2*i,2)}, {V(R0+2*i,2)}, v[94:95]")
        g.poll(5*L+4,236)
        g.stamp(11+12*L)
        it=[]
        for st in range(14):
            for mm in range(4): it.append(((L,"h",st,mm),45+mm,st,g.LS))
            for nt in range(5):
                k=st*5+nt
                if k>=g.NW2: it.append(((L,"W2",k),66,k))
        W.push(it)
        W.issue(g.o.get("pfh",12))
        for st in range(14):
            if st==13:
                for mm in range(4): W.use((L,"h",st,mm))
                for nt in range(5): W.use((L,"W2",st*5+nt))
                sk=e.lab("SK"); e(f"s_cmp_ge_u32 s{sW}, 2\ns_cbranch_scc1 {sk}")
            for nt in range(5):
                a=W.use((L,"W2",st*5+nt))
                for mm in range(4):
                    b=W.use((L,"h",st,mm)); d=g.accreg(mm,nt)
                    e(f"{MF} {d}, {a}, {b}, {d if (st or mm==3) else '0'}")
                    if mm==1 and st<13: W.issue(1)
                W.rel((L,"W2",st*5+nt))
                if st<13: W.issue(1)
            for mm in range(4): W.rel((L,"h",st,mm))
            if st==13: e(f"s_nop 7\n{sk}:")
        g.stamp("f2_mm")
        if not last:
            g.qkv_cursors(); g.push_kv(L+1)
        W.issue(g.o.get("pf2",16))
        g.reduce_epi(L,2,last)
        g.stamp("f2_red")
        if not last: g.publish(5*L+5,pf=g.o.get("pf3",16))
def gen_main(name,opts):
    g=G(opts); e=g.e; upto=opts.get("upto",99)
    g.prologue(name)
    g.stamp(0)
    g.qkv_cursors(); g.push_kv(0)
    n=0
    for L in range(2):
        for ph,st in ((g.qkv,5),(g.attention,7),(g.wo,None),(g.ffn1,None),(g.ffn2,12)):
            if n>=upto: break
            g.curL=L; ph(L); n+=1
            if st is not None: g.stamp(st+12*L)
    e("s_waitcnt vmcnt(0)\nM_END:\ns_endpgm")
    if opts.get("fine") is not None: print("STAMPS",g.names)
    return fix_hazards(e.L)
```

```python
from emit import *
from lay import *
import copy
MF="v_mfma_f32_16x16x32_bf16"
WS="s[4:7]"; OUT="s[8:11]"; B1="s[12:15]"; B2="s[16:19]"
sC,sJ,sW=20,21,22
sFL=23
sT=[24,25,26,27,28,29,30,31]
R0=4
LDS_ST=102400; LDS_QX=103424; LDS_RED=0; OEX=107520-61440
class WQ:
    def __init__(s,e): s.e=e; s.free=list(range(64)); s.q=[]; s.slot={}; s.cur={}; s.fixed={}
    def copy(s,e):
        c=WQ(e); c.free=list(s.free); c.q=list(s.q); c.slot=dict(s.slot); c.cur=dict(s.cur); c.fixed=dict(s.fixed); return c
    def push(s,items): s.q+=items
    def cursor(s,sg): s.cur[sg]=0
    def issue(s,n=1,mod=""):
        k=0
        while k<n and s.q and s.free:
            it=s.q[0]; tag,sg,idx=it[:3]; m2=it[3] if len(it)>3 else mod
            if tag in s.fixed:
                if s.fixed[tag] not in s.free: break
                sl=s.fixed[tag]; s.free.remove(sl)
            else:
                res=set(s.fixed[t[0]] for t in s.q if t[0] in s.fixed)
                cand=[x for x in s.free if x not in res] or s.free
                sl=cand[0]; s.free.remove(sl)
            s.q.pop(0); s.slot[tag]=sl
            while s.cur[sg]<idx//4: s.e(f"s_add_u32 s{sg}, s{sg}, 4096"); s.cur[sg]+=1
            assert s.cur[sg]==idx//4,(tag,sg,idx,s.cur[sg])
            o=(idx%4)*1024
            s.e.vmem(f"buffer_load_dwordx4 {A(4*sl,4)}, v1, {WS}, s{sg} offen"+(f" offset:{o}" if o else "")+m2,tag); k+=1
        return k
    def ensure(s,tag):
        while tag not in s.slot:
            assert s.q and s.free,("cannot ensure",tag,len(s.q),len(s.free))
            assert s.issue(1)==1,("stuck",tag,s.q[0])
    def use(s,tag):
        s.ensure(tag); s.e.wvm(tag); return A(4*s.slot[tag],4)
    def rel(s,tag): s.free.append(s.slot.pop(tag))
    def take(s,tag): sl=s.free.pop(0); s.slot[tag]=sl; return sl
def interleave(e,mains,fill,per=1,lead=0):
    fill=list(fill); n=len(mains)
    for i,m in enumerate(mains):
        m()
        rem=n-i
        k=-(-len(fill)//rem) if rem>0 else len(fill)
        for _ in range(min(k,len(fill))): fill.pop(0)()
    for f in fill: f()
class G:
    def __init__(g,opts):
        opts=dict(opts)
        if opts.get('plain'): opts['xmode']='plain'
        g.LS='' if opts.get('nols') else ' sc1'
        g.o=opts; g.e=E(); g.w=WQ(g.e); g.nst=0; g.maps={}; g.NW2=opts.get('nw2',48); g.SK='' if opts.get('plainkv') else ' sc1';  g.names=[]; g.curL=0
    def stamp(g,i):
        if not g.o.get("prof"): return
        if g.o.get("fine") is not None:
            if isinstance(i,int): i=f"s{i}"
            if g.curL!=g.o["fine"] and i!="s0": return
            if i not in g.names: g.names.append(i)
            i=g.names.index(i)
            assert i<32
        elif not isinstance(i,int): return
        e=g.e
        e("s_memtime s[98:99]"); e.wlg0()
        e(f"v_mov_b32 v255, s98\ns_lshl_b32 s98, s2, 2\ns_add_u32 s98, s98, s{sW}\ns_lshl_b32 s98, s98, 7\ns_add_u32 s98, s98, {(60<<20)+4*i}")
        e("s_mov_b64 exec, 1"); e.vmem(f"buffer_store_dword v255, off, s[100:103], s98".replace("s[100:103]","s[92:95]")); e("s_mov_b64 exec, -1")
    def xst(g,txt,tag=None):
        e=g.e; m=g.o.get('xmode','auto')
        if m=='sc1': return e.vmem(txt+" sc1")
        if m=='plain': return e.vmem(txt)
        a=e.lab("XS"); b=e.lab("XE")
        e(f"s_cmp_eq_u32 s72, 0\ns_cbranch_scc1 {a}")
        e.vmem(txt)
        e(f"s_branch {b}\n{a}:\n{txt} sc1\n{b}:")
    def cpf(g,va,vd,tag):
        e=g.e; l=e.lab("LPC")
        e(f"""s_getpc_b64 s[34:35]
{l}:
s_lshr_b32 s36, s2, 3
s_lshl_b32 s36, s36, 2
s_add_u32 s36, s36, s{sW}
s_lshl_b32 s36, s36, 10
s_min_u32 s36, s36, M_END-{l}-1024
s_add_u32 s34, s34, s36
s_addc_u32 s35, s35, 0
v_mov_b32 v{va+1}, s35
v_add_co_u32 v{va}, vcc, s34, v1
v_addc_co_u32 v{va+1}, vcc, 0, v{va+1}, vcc""")
        e.vmem(f"global_load_dwordx4 {V(vd,4)}, {V(va,2)}, off",tag)
    def publish(g,seq,pf=0,mark=None):
        e=g.e
        if mark is None:
            e.vm.p["__st"]=0
            if pf: g.w.issue(pf)
            e.wvm("__st")
        else:
            assert mark in e.vm.p or True
            if mark in e.vm.p: e.wvm(mark)
        e(f"v_mov_b32 v3, {seq}\ns_mov_b64 exec, 1")
        t=f"buffer_store_dword v3, off, {WS}, s{sFL}"
        if seq%5==1: e.vmem(t+" sc1")
        else: g.xst(t)
        e("s_mov_b64 exec, -1")
    def poll(g,seq,vaddr):
        e=g.e; l=e.lab("PL"); d=e.lab("PD")
        if seq==1 and g.o.get('xmode','auto')=='auto':
            e(f"s_lshl_b32 s25, s{sC}, 5\ns_add_u32 s25, s25, {FLAGS+4096}\nv_and_b32 v217, 7, v0\nv_lshlrev_b32 v217, 2, v217\nv_add_u32 v217, s25, v217")
            e(f"s_mov_b32 s24, {g.o.get('spin',30000)}\n{l}:")
            e(f"buffer_load_dword v3, v{vaddr}, {WS}, 0 offen sc1\nbuffer_load_dword v216, v217, {WS}, 0 offen sc1\ns_waitcnt vmcnt(0)\nv_cmp_eq_u32 vcc, 0, v216\ns_nop 0\nv_cndmask_b32 v3, v3, v216, vcc\nv_cmp_gt_u32 vcc, {seq}, v3\ns_sub_u32 s24, s24, 1\ns_cbranch_scc1 {d}\ns_cbranch_vccnz {l}\n{d}:")
            e(f"v_cmp_eq_u32 vcc, s73, v216\ns_nop 4\ns_cmp_eq_u64 vcc, -1\ns_cselect_b32 s72, 1, 0")
            if g.o.get('dbgsame'): e(f"v_mov_b32 v216, s72\ns_lshl_b32 s25, s2, 2\ns_add_u32 s25, s25, {61<<20}\ns_mov_b64 exec, 1\nbuffer_store_dword v216, off, s[92:95], s25\ns_mov_b64 exec, -1")
            e.vm.clear(); return
        one=(g.o.get('p1',0)>>(seq%5))&1
        if one:
            sk=e.lab("PS"); e(f"s_cmp_lg_u32 s{sW}, {g.o.get('p1w',3)}\ns_cbranch_scc1 {sk}")
        e(f"s_mov_b32 s24, {g.o.get('spin',30000)}\n{l}:")
        e(f"buffer_load_dword v3, v{vaddr}, {WS}, 0 offen sc1\ns_waitcnt vmcnt(0)\nv_cmp_gt_u32 vcc, {seq}, v3\ns_sub_u32 s24, s24, 1\ns_cbranch_scc1 {d}\ns_cbranch_vccnz {l}\n{d}:")
        if one: e(f"{sk}:\ns_barrier")
        else: e.vm.clear()
    def fork(g,paths):
        e=g.e; end=e.lab("FE"); vm0,lg0,w0=e.vm,e.lg,g.w; res=[]; xn0=getattr(g,'xn',0)
        labs=[e.lab("FK") for _ in paths]
        for (c,_),l in zip(paths[:-1],labs): e(c+f"\ns_cbranch_scc1 {l}")
        e(f"s_branch {labs[-1]}")
        for (c,fn),l in zip(paths,labs):
            e.vm=vm0.copy(); e.lg=lg0.copy(); g.w=w0.copy(e); g.xn=xn0
            e(f"{l}:"); fn(); e(f"s_nop 7\ns_branch {end}"); res.append((e.vm,e.lg,g.w))
        e(f"{end}:")
        e.vm,e.lg,g.w=res[0]
        for vm,lg,w in res[1:]:
            e.vm.merge(vm); e.lg.merge(lg)
            assert w.slot==g.w.slot and w.q==g.w.q,(w.slot,g.w.slot,len(w.q),len(g.w.q))
            for k_ in list(g.w.cur):
                if w.cur.get(k_)!=g.w.cur[k_]: del g.w.cur[k_]
        g.w.free=sorted(g.w.free)
    def prologue(g,name):
        e=g.e
        e(f""".globl {name}
.p2align 8
.type {name},@function
{name}:
s_cmp_ge_u32 s2, 256
s_cbranch_scc1 M_END
s_load_dwordx2 s[24:25], s[0:1], 40
s_load_dwordx2 s[26:27], s[0:1], 56
s_load_dwordx2 s[28:29], s[0:1], 64
s_load_dwordx2 s[30:31], s[0:1], 80
v_lshrrev_b32 v1, 6, v0
v_and_b32 v0, 63, v0
s_nop 0
v_readfirstlane_b32 s{sW}, v1
v_lshlrev_b32 v1, 4, v0
v_lshlrev_b32 v2, 3, v0""")
        if g.o.get("xmap"):
            e(f"s_lshr_b32 s{sC}, s2, 3\ns_and_b32 s{sJ}, s2, 7")
        else:
            e(f"s_and_b32 s{sC}, s2, 7\ns_lshl_b32 s{sC}, s{sC}, 2\ns_lshr_b32 s{sJ}, s2, 6\ns_add_u32 s{sC}, s{sC}, s{sJ}\ns_lshr_b32 s{sJ}, s2, 3\ns_and_b32 s{sJ}, s{sJ}, 7")
        e("s_waitcnt lgkmcnt(0)")
        for d,p,sz in ((4,30,WS_USED),(8,28,2048*1280),(12,24,3456),(16,26,1280),(92,30,64<<20)):
            if d==92 and not g.o.get("prof"): continue
            e(f"s_mov_b32 s{d}, s{p}\ns_mov_b32 s{d+1}, s{p+1}\ns_mov_b32 s{d+2}, {sz}\ns_mov_b32 s{d+3}, 0x00020000")
        e(f"""s_mov_b32 s72, 0
s_getreg_b32 s73, hwreg(HW_REG_XCC_ID, 0, 4)
s_add_u32 s73, s73, 1
s_lshl_b32 s24, s{sC}, 5
s_lshl_b32 s25, s{sJ}, 2
s_add_u32 s24, s24, s25
s_add_u32 s24, s24, {FLAGS+4096}
v_mov_b32 v3, s73
s_mov_b64 exec, 1""")
        e.vmem(f"buffer_store_dword v3, off, {WS}, s24 sc1"); e("s_mov_b64 exec, -1")
        e(f"""s_lshl_b32 s24, s{sC}, 7
s_add_u32 s24, s24, {FLAGS}
s_lshl_b32 s25, s{sJ}, 4
s_lshl_b32 s26, s{sW}, 2
s_add_u32 s25, s25, s26
s_add_u32 s{sFL}, s24, s25
v_and_b32 v236, 31, v0
v_lshlrev_b32 v236, 2, v236
v_add_u32 v236, s24, v236
v_lshrrev_b32 v3, 2, v0
v_cmp_gt_u32 vcc, 20, v0
v_cndmask_b32 v3, 0, v3, vcc
v_sub_u32 v237, s{sC}, v3
v_cmp_gt_i32 vcc, 0, v237
v_mov_b32 v3, s{sC}
v_cndmask_b32 v237, v237, v3, vcc
v_lshlrev_b32 v237, 7, v237
v_and_b32 v3, 3, v0
v_lshlrev_b32 v3, 2, v3
v_add_u32 v237, v237, v3
s_lshl_b32 s25, s{sJ}, 4
s_add_u32 s25, s25, {FLAGS}
v_add_u32 v237, s25, v237
v_add_u32 v238, 61440, v1
v_add_u32 v239, 61440, v2
v_lshrrev_b32 v240, 4, v0
v_and_b32 v241, 15, v0
s_mul_i32 s60, s{sC}, 8
s_add_u32 s60, s60, s{sJ}
s_mov_b32 s68, {"0" if g.o.get("fakej") else "s21"}
s_lshl_b32 s61, s{sC}, 2
s_add_u32 s62, s61, s{sW}""")
        e(f"""s_mul_i32 s24, s62, 20480
s_add_u32 s24, s24, {XF[0]}
s_lshl_b32 s25, s{sJ}, 11
s_add_u32 s25, s25, s24
s_lshr_b32 s26, s{sJ}, 1
s_lshl_b32 s26, s26, 10
s_and_b32 s27, s{sJ}, 1
s_lshl_b32 s27, s27, 9
s_add_u32 s26, s26, s27
s_add_u32 s26, s26, 16384
s_add_u32 s26, s26, s24""")
        if g.o.get("cpf",1): g.cpf(36,40,"cpf0")
        if g.o.get("tio",1):
            e("v_lshlrev_b32 v44, 19, v0\ns_mov_b64 exec, 31"); e.vmem(f"buffer_load_dword v45, v44, {OUT}, 0 offen")
            e("s_mov_b64 exec, 1"); e.vmem(f"buffer_load_dword v45, off, {B1}, 0"); e.vmem(f"buffer_load_dword v45, off, {B2}, 0"); e("s_mov_b64 exec, -1")
        e.vmem(f"buffer_load_dwordx4 v[24:27], v1, {WS}, s25 offen","r0")
        e.vmem(f"buffer_load_dwordx4 v[28:31], v1, {WS}, s25 offen offset:1024","r1")
        e.vmem(f"buffer_load_dwordx2 v[32:33], v2, {WS}, s26 offen","r2")
        if g.o.get("pt",2)&8: g.pt_kv(0)
        e.wvm("r2")
        for i in range(10):
            e(f"v_lshlrev_b32 v{R0+2*i}, 16, v{24+i}\nv_and_b32 v{R0+2*i+1}, 0xffff0000, v{24+i}")
    def qkv_cursors(g):
        e=g.e
        e(f"""s_mul_i32 s24, s68, {15*20480}
s_add_u32 s24, s24, {W_QKV}
s_mul_i32 s25, s{sW}, 20480
s_add_u32 s40, s24, s25
s_add_u32 s41, s40, {4*20480}
s_add_u32 s42, s40, {8*20480}
s_add_u32 s43, s40, {12*20480}""")
        for s in (40,41,42,43): g.w.cursor(s)
    def push_kv(g,L):
        it=[]
        for p in range(20): it+=[((L,"K",p),40,p),((L,"V",p),41,p)]
        g.w.push(it)
    def stage_x(g,xb,stb,extra=None):
        e=g.e
        e(f"s_lshl_b32 s26, s60, 9\ns_and_b32 s26, s26, 0xfffff000\ns_lshl_b32 s27, s{sW}, 7\ns_add_u32 s26, s26, s27\ns_add_u32 s26, s26, {stb}")
        e("v_lshrrev_b32 v24, 3, v0\nv_lshlrev_b32 v24, 9, v24\nv_and_b32 v25, 7, v0\nv_lshlrev_b32 v25, 4, v25\nv_add_u32 v24, v24, v25")
        e.vmem(f"buffer_load_dwordx4 v[28:31], v24, {WS}, s26 offen","stat")
        e(f"s_mul_i32 s69, s62, 20480\ns_add_u32 s69, s69, {xb}\ns_mul_i32 s70, s{sW}, 20480")
        g.xn=0
        for p in range(g.o.get("xup",10)):
            g.xdma()
            if extra: extra(p)
        e.wvm("stat")
        for r in range(4): e(f"v_mov_b32 v{32+r}, v{28+r}")
        for r in range(4): e(f"v_permlane32_swap_b32 v{28+r}, v{32+r}")
        for r in range(4): e(f"v_add_f32 v{28+r}, v{28+r}, v{32+r}")
        for r in range(4): e(f"v_mov_b32 v{32+r}, v{28+r}")
        for r in range(4): e(f"v_permlane16_swap_b32 v{28+r}, v{32+r}")
        for r in range(4): e(f"v_add_f32 v{28+r}, v{28+r}, v{32+r}")
        for r in range(4): e(f"v_add_f32_dpp v{28+r}, v{28+r}, v{28+r} row_ror:8 row_mask:0xf bank_mask:0xf")
        e("s_mov_b32 s26, 0xbacccccd\ns_mov_b32 s27, 0x3acccccd")
        e(f"""v_mul_f32 v32, s26, v28
v_mul_f32 v33, s26, v30
v_mul_f32 v34, s27, v29
v_mul_f32 v35, s27, v31
v_fma_f32 v34, -v32, v32, v34
v_fma_f32 v35, -v33, v33, v35
v_max_f32 v34, 0, v34
v_max_f32 v35, 0, v35
v_add_f32 v34, 0x3727c5ac, v34
v_add_f32 v35, 0x3727c5ac, v35
v_rsq_f32 v34, v34
v_rsq_f32 v35, v35
v_and_b32 v24, 7, v0
v_lshlrev_b32 v24, 3, v24
s_lshl_b32 s26, s{sW}, 6
s_add_u32 s26, s26, {LDS_ST}
v_add_u32 v24, s26, v24
s_mov_b64 exec, 0xff""")
        e.ds("ds_write_b64 v24, v[32:33]"); e.ds("ds_write_b64 v24, v[34:35] offset:256"); e("s_mov_b64 exec, -1")
    def xdma(g):
        e=g.e; p=g.xn
        if p>=20: return
        g.xn+=1
        if p and p%4==0: e("s_add_u32 s69, s69, 4096\ns_add_u32 s70, s70, 4096")
        e("s_mov_b32 m0, s70")
        e.vmem(f"buffer_load_dwordx4 v1, {WS}, s69 offen offset:{(p%4)*1024}{g.LS} lds",("xd",p))
    def chunk(g,k):
        e=g.e
        while g.xn<5*k+5: g.xdma()
        e.wvm(("xd",5*k+4))
        if k==0: e.wlg0()
        e("s_barrier")
    def xread(g,p,m,dst):
        e=g.e
        if p<16:
            b,o=("v1",m*20480+p*1024) if m<3 else ("v238",p*1024)
            e.ds(f"ds_read_b128 {V(dst,4)}, {b} offset:{o}",("x",p,m))
        else:
            b,o=("v2",m*20480+p*1024) if m<3 else ("v239",p*1024)
            e.ds(f"ds_read_b64 {V(dst,2)}, {b} offset:{o}")
            e.ds(f"ds_read_b64 {V(dst+2,2)}, {b} offset:{o+512}",("x",p,m))
    def gemm_x(g,tiles,pf,chunks=False):
        e=g.e
        XB=lambda p,m: 24+16*(p&1)+4*m
        if chunks: g.chunk(0)
        for m in range(4): g.xread(0,m,XB(0,m))
        for p in range(20):
            if chunks and p in (4,9,14): g.chunk((p+1)//5)
            mains=[]
            for (acc,sw,tf) in tiles:
                for m in range(4):
                    def mm(acc=acc,sw=sw,tf=tf,m=m,p=p):
                        a=g.w.use(tf(p)); e.wlg(("x",p,m)); x=V(XB(p,m),4); d=V(acc+4*m,4); c=d if p else "0"
                        e(f"{MF} {d}, {x}, {a}, {c}" if sw else f"{MF} {d}, {a}, {x}, {c}")
                        if m==3: g.w.rel(tf(p))
                    mains.append(mm)
            fl=[]
            if p<19:
                for m in range(4): fl.append(lambda m=m,p=p: g.xread(p+1,m,XB(p+1,m)))
            if chunks and p%g.o.get("xev",1)==0: fl.append(g.xdma)
            for _ in range(pf(p)): fl.append(lambda: g.w.issue(1))
            interleave(e,mains,fl)
    def load_stats(g,row):
        e=g.e
        e(f"v_lshlrev_b32 v3, 2, v241\nv_add_u32 v3, {LDS_ST}, v3")
        for m in range(4):
            e.ds(f"ds_read_b32 v{136+m}, v3 offset:{64*m}","s"); e.ds(f"ds_read_b32 v{140+m}, v3 offset:{256+64*m}","s")
        if row:
            e(f"v_lshlrev_b32 v3, 4, v240\nv_add_u32 v3, {LDS_ST}, v3")
            for m in range(4):
                e.ds(f"ds_read_b128 {V(144+4*m,4)}, v3 offset:{64*m}","s"); e.ds(f"ds_read_b128 {V(160+4*m,4)}, v3 offset:{256+64*m}","s")
        e.wlg0()
    def bc(g,r):
        return (V(r&~1,2), r&1)
    def norm(g,acc,m,cs,sw,rs=None,mul=True):
        e=g.e; a=acc+4*m
        for h in range(2):
            d=V(a+2*h,2)
            if sw:
                pr,o=g.bc(cs); e(f"v_pk_fma_f32 {d}, {V(144+4*m+2*h,2)}, {pr}, {d} op_sel:[0,{o},0] op_sel_hi:[1,{o},1]")
            else:
                pr,o=g.bc(136+m); e(f"v_pk_fma_f32 {d}, {V(cs+2*h,2)}, {pr}, {d} op_sel:[0,{o},0] op_sel_hi:[1,{o},1]")
        if not mul: return
        for h in range(2):
            d=V(a+2*h,2)
            if sw: e(f"v_pk_mul_f32 {d}, {d}, {V(160+4*m+2*h,2)}")
            else:
                pr,o=g.bc((rs or 140)+m); e(f"v_pk_mul_f32 {d}, {d}, {pr} op_sel:[0,{o}] op_sel_hi:[1,{o}]")
    def norm_cvt(g,acc,m,cs,dst,sw,rs=None):
        g.norm(acc,m,cs,sw,rs); a=acc+4*m
        g.e(f"v_cvt_pk_bf16_f32 v{dst}, v{a}, v{a+1}\nv_cvt_pk_bf16_f32 v{dst+1}, v{a+2}, v{a+3}")
    def qkv(g,L):
        e=g.e; xb=XF[2*L]; stb=ST[2*L]
        aK,aV,aX,aQ,aQX=56,72,88,104,120
        cK,cQ,cX,cV=176,180,184,188
        def path(wv):
            def fn():
                W=g.w
                hasx=wv<3;
                e(f"s_mul_i32 s24, s{sJ}, 960\ns_lshl_b32 s25, s{sW}, 6\ns_add_u32 s24, s24, s25\ns_add_u32 s24, s24, {CS_QKV}\nv_lshlrev_b32 v3, 4, v240\nv_lshlrev_b32 v192, 2, v241")
                e.vmem(f"buffer_load_dwordx4 {V(cK,4)}, v3, {WS}, s24 offen","cs"); e.vmem(f"buffer_load_dwordx4 {V(cQ,4)}, v3, {WS}, s24 offen offset:512","cs")
                e.vmem(f"buffer_load_dword v{cV}, v192, {WS}, s24 offen offset:256","cs")
                if wv==0 or wv==2: e.vmem(f"buffer_load_dwordx4 {V(cX,4)}, v3, {WS}, s24 offen offset:768","cs")
                if wv==1: e.vmem(f"buffer_load_dword v{cX}, v192, {WS}, s24 offen offset:768","cs")
                rest=W.q; W.q=[]
                if hasx:
                    kv={t[0]:t for t in rest}; it=[]
                    for p in range(20):
                        for n in ("K","V"):
                            if (L,n,p) in kv: it.append(kv[(L,n,p)])
                        it.append(((L,"X",p),43,p))
                    W.push(it)
                else: W.push(rest)
                W.push([((L,"Q",p),42,p) for p in range(20)])
                if L>0:
                    W.issue(g.o.get("pfq",0)); g.poll(5*L,236)
                g.stamp(1+12*L)
                g.stage_x(xb,stb,(lambda p: W.issue(g.o.get("pf0",2))) if L==0 else None)
                g.stamp(2+12*L)
                tiles=[(aK,False,lambda p:(L,"K",p)),(aV,True,lambda p:(L,"V",p))]
                if hasx: tiles.append((aX,wv==1,lambda p:(L,"X",p)))
                g.gemm_x(tiles,lambda p:(3 if hasx else 2) if L==0 else g.o.get("pfK",3),chunks=True)
                g.stamp(3+12*L)
                kvo=g.o.get("kvo",0)
                if kvo: W.issue(g.o.get("kvoq",20))
                g.load_stats(True); e.wvm("cs")
                e(f"s_lshl_b32 s24, s60, 14\ns_add_u32 s24, s24, {KBUF[L]}\ns_lshl_b32 s25, s{sW}, 12\ns_add_u32 s25, s25, s24\ns_mul_i32 s26, s60, 10240\ns_add_u32 s26, s26, {VBUF[L]}\ns_lshl_b32 s27, s{sW}, 11\ns_add_u32 s27, s27, s26\ns_add_u32 s26, s26, 8192")
                T=24
                if wv==2:
                    for m in range(4): e(f"v_mul_f32 v{194+m}, 0x3ea52b5c, v{140+m}")
                if wv in (0,2):
                    for m in range(4):
                        g.norm_cvt(aX,m,cX,T+16+2*m,False,rs=(140 if wv==0 else 194))
                        e.ds(f"ds_write_b64 v239, {V(T+16+2*m,2)} offset:{LDS_QX-61440+512*m+(2048 if wv==0 else 0)}")
                for m in range(4):
                    g.norm_cvt(aV,m,cV,T+24+2*m,True)
                    if m&1: e.vmem(f"buffer_store_dwordx4 {V(T+24+2*m-2,4)}, v1, {WS}, s27 offen offset:{1024*(m>>1)}{g.SK}")
                if wv==1:
                    for m in range(4):
                        g.norm_cvt(aX,m,cX,T+16+2*m,True)
                        if m&1: e.vmem(f"buffer_store_dwordx4 {V(T+16+2*m-2,4)}, v1, {WS}, s26 offen offset:{1024*(m>>1)}{g.SK}")
                for m in range(4):
                    g.norm_cvt(aK,m,cK,T+4*m,False)
                e.wlg0(); e("s_barrier")
                for m in range(4): e.ds(f"ds_read_b64 {V(T+4*m+2,2)}, v239 offset:{LDS_QX-61440+2048+512*m}",("kx",m))
                for m in range(4): e.ds(f"ds_read_b64 {V(202+4*m,2)}, v239 offset:{LDS_QX-61440+512*m}",("qx",m))
                for m in range(4):
                    e.wlg(("kx",m)); e.vmem(f"buffer_store_dwordx4 {V(T+4*m,4)}, v1, {WS}, s25 offen offset:{1024*m}{g.SK}")
                e.wlg0()
                e(f"v_cmp_eq_u32 vcc, s{sW}, v240")
                for m in range(4):
                    for r in range(2): e(f"v_cndmask_b32 v{202+4*m+r}, 0, v{202+4*m+r}, vcc")
                g.stamp("kv_st")
                if not kvo: g.publish(5*L+1,pf=g.o.get("pfkv",20))
                g.stamp(4+12*L)
                tiles=[(aQ,False,lambda p:(L,"Q",p))]
                if kvo:
                    e.vm.p["__kvst"]=0
                    pubp=g.o.get("pubp",16)
                    def pfq(p):
                        if p==pubp: g.publish(5*L+1,mark="__kvst")
                        return g.o.get("pfQ",2)
                    g.gemm_x(tiles,pfq)
                    if pubp>=20: g.publish(5*L+1,mark="__kvst")
                else: g.gemm_x(tiles,lambda p:g.o.get("pfQ",2))
                g.stamp("q_mm")
                e("s_mov_b32 s24, 0x3ea52b5c")
                for m in range(4): e(f"v_mul_f32 v{140+m}, s24, v{140+m}")
                for m in range(4):
                    g.norm_cvt(aQ,m,cQ,200+4*m,False)
                while W.q: assert W.issue(1)==1
                for t_,sl in W.slot.items(): g.maps.setdefault(t_,sl)
            return fn
        g.fork([(f"s_cmp_eq_u32 s{sW}, 0",path(0)),(f"s_cmp_eq_u32 s{sW}, 1",path(1)),(f"s_cmp_eq_u32 s{sW}, 2",path(2)),(None,path(3))])
    def wo_dma(g,L):
        e=g.e
        e(f"s_lshl_b32 s44, s68, 2\ns_add_u32 s44, s44, s{sW}\ns_mul_i32 s44, s44, 25600\ns_add_u32 s44, s44, {W_O}\ns_mul_i32 s70, s{sW}, 25600")
        def one(k):
            if k and k%4==0: e("s_add_u32 s44, s44, 4096\ns_add_u32 s70, s70, 4096")
            e("s_mov_b32 m0, s70")
            e.vmem(f"buffer_load_dwordx4 v1, {WS}, s44 offen offset:{(k%4)*1024} lds",("wod",k))
        return [(lambda k=k: one(k)) for k in range(25)]
    def w1_cursor(g,sg,ps):
        e=g.e
        if ps==0:
            e(f"""s_mul_i32 s63, s{sJ}, 7
s_cmp_eq_u32 s{sJ}, 7
s_cselect_b32 s63, 48, s63
s_lshl_b32 s24, s{sW}, 1
s_add_u32 s63, s63, s24
s_min_u32 s63, s63, 53""")
        if g.o.get("fakej"): e(f"s_lshl_b32 s24, s{sW}, 1\ns_add_u32 s24, s24, {ps}")
        else: e(f"s_add_u32 s24, s63, {ps}\ns_min_u32 s24, s24, 53")
        e(f"s_mul_i32 s24, s24, 40960\ns_add_u32 s{sg}, s24, {W_1}"); g.w.cursor(sg)
    def attention(g,L):
        e=g.e; W=g.w
        NEG="0xf149f2ca"
        S0,P0,OM,OX,VX,MK,QF=24,92,128,132,136,176,200
        e(f"s_mov_b32 s25, {NEG}\nv_lshlrev_b32 v3, 2, v240\nv_mov_b32 v216, s25")
        for d in (4,3,2,1):
            e(f"s_cmp_lt_u32 s{sC}, {d}\ns_cselect_b32 s24, s25, 0")
            for r in range(4): e(f"v_mov_b32 v{MK+8+4*(4-d)+r}, s24")
        for r in range(4):
            e(f"v_add_u32 v217, {r}, v3\nv_cmp_le_u32 vcc, v217, v241\nv_cndmask_b32 v{MK+r}, v216, 0, vcc".replace("v216, 0, vcc","v216, v219, vcc") if False else
              f"v_add_u32 v217, {r}, v3\nv_cmp_gt_u32 vcc, v217, v241\nv_cndmask_b32 v{MK+r}, 0, v216, vcc\nv_cndmask_b32 v{MK+4+r}, v216, v{MK+8+r}, vcc")
        for i in range(40): e(f"v_mov_b32 v{VX+i}, 0x3f803f80")
        for k,d in enumerate((4,3,2,1,0)):
            e(f"""s_sub_u32 s24, s{sC}, {d}
s_cmp_lt_u32 s{sC}, {d}
s_cselect_b32 s24, s{sC}, s24
s_lshl_b32 s24, s24, 3
s_add_u32 s24, s24, s{sJ}
s_lshl_b32 s25, s24, 14
s_lshl_b32 s26, s{sW}, 12
s_add_u32 s25, s25, s26
s_add_u32 s{45+k}, s25, {KBUF[L]}
s_mul_i32 s25, s24, 10240
s_add_u32 s{50+k}, s25, {VBUF[L]}""")
        e(f"s_lshl_b32 s55, s{sW}, 11\nv_add_u32 v218, s55, v1\nv_add_u32 v219, 8192, v1\nv_lshrrev_b32 v3, 2, v241\nv_cmp_eq_u32 s[56:57], s{sW}, v3")
        e(f"s_and_b32 s24, s{sW}, 1\ns_cmp_eq_u32 s24, 1\ns_cselect_b64 s[58:59], -1, 0")
        e(f"s_lshr_b32 s24, s{sW}, 1\ns_lshl_b32 s24, s24, 10\ns_and_b32 s25, s{sW}, 1\ns_lshl_b32 s25, s25, 3\ns_add_u32 s24, s24, s25\nv_add_u32 v229, s24, v238")
        g.poll(5*L+1,237)
        g.stamp(6+12*L)
        def ldK(u):
            sl=W.take((L,"k",u)); o=(u&3)*1024
            e.vmem(f"buffer_load_dwordx4 {A(4*sl,4)}, v1, {WS}, s{45+(u>>2)} offen offset:{o}",(L,"k",u))
        def ldV(pi):
            sl=W.take((L,"v",pi)); o=(pi&1)*1024
            e.vmem(f"buffer_load_dwordx4 {A(4*sl,4)}, v218, {WS}, s{50+(pi>>1)} offen offset:{o}",(L,"v",pi))
        def ldX(pi):
            o=(pi&1)*1024
            e.vmem(f"buffer_load_dwordx4 {V(VX+4*pi,4)}, v219, {WS}, s{50+(pi>>1)} offen offset:{o}",(L,"x",pi))
        e("s_barrier")
        for u in range(17): ldK(u)
        def ldXm(pis):
            e("s_mov_b64 exec, s[56:57]")
            for pi in pis: ldX(pi)
            e("s_mov_b64 exec, -1")
        late=[(lambda pi=pi: ldV(pi)) for pi in range(5)]+[lambda: ldXm(range(5))]+[(lambda pi=pi: ldV(pi)) for pi in range(5,9)]+[lambda: ldXm(range(5,10))]
        late+=[(lambda u=u: ldK(u)) for u in range(17,20)]+[lambda: ldV(9)]
        late+=g.wo_dma(L)
        pto=g.o.get("pt",2)
        if pto&1 and L==0: late.append(lambda: g.pt_x(L))
        if pto&2 and L==0 and g.o.get("pta",2)<0: late.append(lambda: g.pt_h(L))
        if pto&4 and L==0: late.append(lambda: g.pt_kv(1))
        g.w1_cursor(64,0)
        W.push([((L,"W1",0,k),64,k) for k in range(40)])
        g.w1_cursor(65,1)
        W.push([((L,"W1",1,k),65,k) for k in range(40)])
        def cop(i,u):
            if u==i: return V(MK+4,4)
            if u==16+i: return V(MK,4)
            d=4-(u>>2)
            return V(MK+8+4*(4-d),4) if d>0 else "0"
        def qk(i,q):
            u=i+q; e.wvm((L,"k",u))
            e(f"{MF} {V(S0+4*q,4)}, {A(4*W.slot[(L,'k',u)],4)}, {V(QF+4*i,4)}, {cop(i,u)}")
        def pv(i):
            f=[]
            for k in range(9):
                pi=(i>>1)+k
                def a(k=k,pi=pi):
                    e.wvm((L,"v",pi)); e(f"{MF} {V(OM,4)}, {A(4*W.slot[(L,'v',pi)],4)}, {V(P0+4*k,4)}, {V(OM,4) if k else '0'}")
                def b(k=k,pi=pi):
                    e.wvm((L,"x",pi)); e(f"{MF} {V(OX,4)}, {V(VX+4*pi,4)}, {V(P0+4*k,4)}, {V(OX,4) if k else '0'}")
                f+=[a,b]
            return f
        def fin(i):
            e(f"""v_mov_b32 v220, v{OX}
v_mov_b32 v221, v{OX}
v_permlane16_swap_b32 v220, v221
v_cndmask_b32 v220, v221, v220, s[58:59]
v_rcp_f32 v220, v220""")
            for r in range(8): e(f"v_mul_f32 v{OM+r}, v220, v{OM+r}")
            e(f"v_cvt_pk_bf16_f32 v222, v{OM}, v{OM+1}\nv_cvt_pk_bf16_f32 v223, v{OM+2}, v{OM+3}\nv_cvt_pk_bf16_f32 v224, v{OX}, v{OX+1}\nv_cvt_pk_bf16_f32 v225, v{OX+2}, v{OX+3}")
            e.ds(f"ds_write_b64 v229, v[222:223] offset:{OEX+2560*i}")
            e(f"v_cmp_eq_u32 vcc, s{sW}, v240\ns_mov_b64 exec, vcc")
            e.ds(f"ds_write_b64 v239, v[224:225] offset:{OEX+2560*i+2048}"); e("s_mov_b64 exec, -1")
        for q in range(17): qk(0,q)
        g.stamp("a_qk0")
        npf=g.o.get("pfa",3)
        for i in range(4):
            va=[]
            vals=[S0+k for k in range(68)]
            va.append(lambda: e(f"v_max3_f32 v226, v{vals[0]}, v{vals[1]}, v{vals[2]}"))
            va.append(lambda: e(f"v_max3_f32 v228, v{vals[3]}, v{vals[4]}, v{vals[5]}"))
            k=6
            while k<68:
                va.append(lambda k=k: e(f"v_max3_f32 v226, v226, v{vals[k]}, v{vals[k+1]}")); k+=2
                if k<68: va.append(lambda k=k: e(f"v_max3_f32 v228, v228, v{vals[k]}, v{vals[k+1]}")); k+=2
            va.append(lambda: e("v_max_f32 v226, v226, v228\nv_mov_b32 v227, v226\nv_permlane32_swap_b32 v226, v227\nv_max_f32 v226, v226, v227\nv_mov_b32 v227, v226\nv_permlane16_swap_b32 v226, v227\nv_max_f32 v226, v226, v227\nv_mov_b32 v227, v226"))
            for k in range(34): va.append(lambda k=k: e(f"v_pk_add_f32 {V(S0+2*k,2)}, {V(S0+2*k,2)}, v[226:227] neg_lo:[0,1] neg_hi:[0,1]"))
            if i>0:
                m=pv(i-1)
                vi=0
                for mm in m:
                    mm()
                    for _ in range(3):
                        if vi<len(va): va[vi](); vi+=1
                for f in va[vi:]: f()
                fin(i-1)
            else:
                for n_,f in enumerate(va):
                    f()
                    if n_%5==0 and late: late.pop(0)()
            if i%2==0: e(f"v_mov_b32 v{P0+34}, 0\nv_mov_b32 v{P0+35}, 0")
            else: e(f"v_mov_b32 v{P0}, 0\nv_mov_b32 v{P0+1}, 0")
            pend=None
            for q in range(17):
                s=S0+4*q; pp=P0+2*q+(2 if i%2 else 0)
                for r in range(4): e(f"v_exp_f32 v{s+r}, v{s+r}")
                if pend is not None: pend()
                e(f"v_cvt_pk_bf16_f32 v{pp}, v{s}, v{s+1}\nv_cvt_pk_bf16_f32 v{pp+1}, v{s+2}, v{s+3}")
                pend=(lambda q=q: qk(i+1,q)) if i<3 else None
                if late: late.pop(0)()
                elif q%g.o.get("pfa2",3)==1: W.issue(1)
            if pend is not None: pend()
            W.issue(npf)
            if pto&2 and L==0 and g.o.get("pta",2)==i: g.pt_h(L)
            g.stamp(f"a_t{i}")
        while late: late.pop(0)()
        for f in pv(3): f()
        for u in range(20): W.rel((L,"k",u))
        fin(3)
        for pi in range(10): W.rel((L,"v",pi))
        g.stamp("a_fin")
        e(f"""s_mul_i32 s24, s{sW}, 2560
v_add_u32 v3, s24, v238
v_add_u32 v229, s24, v239
s_mul_i32 s24, s62, 20480
s_add_u32 s24, s24, {OB[L]}
s_lshl_b32 s25, s{sJ}, 11
s_add_u32 s25, s25, s24
s_lshr_b32 s26, s{sJ}, 1
s_lshl_b32 s26, s26, 10
s_and_b32 s27, s{sJ}, 1
s_lshl_b32 s27, s27, 9
s_add_u32 s26, s26, s27
s_add_u32 s26, s26, 16384
s_add_u32 s26, s26, s24""")
        e.wvm(("wod",24)); e.wlg0(); e("s_barrier")
        e.ds(f"ds_read_b128 v[24:27], v3 offset:{OEX}","oa"); e.ds(f"ds_read_b128 v[28:31], v3 offset:{OEX+1024}","ob"); e.ds(f"ds_read_b64 v[32:33], v229 offset:{OEX+2048}","oc")
        e.wlg("oa"); g.xst(f"buffer_store_dwordx4 v[24:27], v1, {WS}, s25 offen")
        e.wlg("ob"); g.xst(f"buffer_store_dwordx4 v[28:31], v1, {WS}, s25 offen offset:1024")
        e.wlg("oc"); g.xst(f"buffer_store_dwordx2 v[32:33], v2, {WS}, s26 offen")
        g.publish(5*L+2,pf=g.o.get("pfo",24))
    def reduce_epi(g,L,k,final,red=True,pf=0):
        e=g.e
        if red: g.reduce(pf)
        g.epi(L,k,final)
    def reduce(g,pf):
        e=g.e
        for mm in range(3):
            e(f"s_add_u32 s24, s{sW}, {1+mm}\ns_and_b32 s24, s24, 3\ns_mul_i32 s24, s24, 15360\nv_add_u32 v3, s24, v1")
            for nt in range(5): e.ds(f"ds_write_b128 v3, {V(24+20*mm+4*nt,4)} offset:{mm*5120+nt*1024}")
        e(f"s_mul_i32 s24, s{sW}, 15360\nv_add_u32 v3, s24, v1")
        e.wlg0(); e("s_barrier")
        for mm in range(3):
            for nt in range(5): e.ds(f"ds_read_b128 {V(24+20*mm+4*nt,4)}, v3 offset:{mm*5120+nt*1024}",("r",mm,nt))
        for mm in range(3):
            for nt in range(5):
                e.wlg(("r",mm,nt))
                for h in range(2): e(f"v_pk_add_f32 {V(R0+4*nt+2*h,2)}, {V(R0+4*nt+2*h,2)}, {V(24+20*mm+4*nt+2*h,2)}")
        e.lg.clear()
    def epi(g,L,k,final):
        e=g.e
        for i in range(10): e(f"v_cvt_pk_bf16_f32 v{24+i}, v{R0+2*i}, v{R0+2*i+1}")
        if final:
            e(f"""s_lshl_b32 s24, s62, 4
v_add_u32 v3, s24, v241
v_mul_u32_u24 v3, 1280, v3
v_lshlrev_b32 v34, 3, v240
v_add_u32 v3, v3, v34
s_mul_i32 s24, s{sJ}, 160""")
            for nt in range(5): e.vmem(f"buffer_store_dwordx2 {V(24+2*nt,2)}, v3, {OUT}, s24 offen offset:{32*nt}")
            return
        e(f"""s_mul_i32 s24, s62, 20480
s_add_u32 s24, s24, {XF[k]}
s_lshl_b32 s25, s{sJ}, 11
s_add_u32 s25, s25, s24
s_lshr_b32 s26, s{sJ}, 1
s_lshl_b32 s26, s26, 10
s_and_b32 s27, s{sJ}, 1
s_lshl_b32 s27, s27, 9
s_add_u32 s26, s26, s27
s_add_u32 s26, s26, 16384
s_add_u32 s26, s26, s24""")
        g.xst(f"buffer_store_dwordx4 v[24:27], v1, {WS}, s25 offen")
        g.xst(f"buffer_store_dwordx4 v[28:31], v1, {WS}, s25 offen offset:1024")
        g.xst(f"buffer_store_dwordx2 v[32:33], v2, {WS}, s26 offen")
        e(f"v_pk_mul_f32 v[36:37], {V(R0,2)}, {V(R0,2)}\nv_pk_add_f32 v[34:35], {V(R0,2)}, {V(R0+2,2)}\nv_pk_fma_f32 v[36:37], {V(R0+2,2)}, {V(R0+2,2)}, v[36:37]")
        for i in range(2,10): e(f"v_pk_add_f32 v[34:35], v[34:35], {V(R0+2*i,2)}\nv_pk_fma_f32 v[36:37], {V(R0+2*i,2)}, {V(R0+2*i,2)}, v[36:37]")
        e("""v_add_f32 v34, v34, v35
v_add_f32 v35, v36, v37
v_mov_b32 v36, v34
v_mov_b32 v37, v35
v_permlane32_swap_b32 v34, v36
v_permlane32_swap_b32 v35, v37
v_add_f32 v34, v34, v36
v_add_f32 v35, v35, v37
v_mov_b32 v36, v34
v_mov_b32 v37, v35
v_permlane16_swap_b32 v34, v36
v_permlane16_swap_b32 v35, v37
v_add_f32 v34, v34, v36
v_add_f32 v35, v35, v37""")
        e(f"s_lshl_b32 s24, s60, 9\ns_lshl_b32 s25, s{sW}, 7\ns_add_u32 s24, s24, s25\ns_add_u32 s24, s24, {ST[k]}\ns_mov_b64 exec, 0xffff")
        g.xst(f"buffer_store_dwordx2 v[34:35], v2, {WS}, s24 offen"); e("s_mov_b64 exec, -1")
    def accreg(g,mm,nt): return V(24+20*mm+4*nt,4) if mm<3 else V(R0+4*nt,4)
    def wo(g,L):
        e=g.e; W=g.w
        e(f"s_mul_i32 s45, s62, 20480\ns_add_u32 s45, s45, {OB[L]}\ns_add_u32 s46, s45, 16384")
        g.poll(5*L+2,236)
        g.stamp(8+12*L)
        OF=lambda p: 84+4*p
        for p in range(16):
            if p and p%4==0: e("s_add_u32 s45, s45, 4096")
            e.vmem(f"buffer_load_dwordx4 {V(OF(p),4)}, v1, {WS}, s45 offen offset:{1024*(p%4)}{g.LS}",("o",p))
        for x in range(4):
            e.vmem(f"buffer_load_dwordx2 {V(OF(16+x),2)}, v2, {WS}, s46 offen offset:{1024*x}{g.LS}")
            e.vmem(f"buffer_load_dwordx2 {V(OF(16+x)+2,2)}, v2, {WS}, s46 offen offset:{1024*x+512}{g.LS}",("o",16+x))
        seq=[]
        for p in range(20):
            wv,st=(p>>2,p&3) if p<16 else (p-16,4)
            for nt in range(5): seq.append((p,nt,wv*25600+(st*5+nt)*1024))
        NR=8
        def rd(i):
            p,nt,ad=seq[i]; b,o=("v1",ad) if ad<61440 else ("v238",ad-61440)
            e.ds(f"ds_read_b128 {V(24+4*(i%NR),4)}, {b} offset:{o}",("wl",i))
        for i in range(NR-1): rd(i)
        for i,(p,nt,ad) in enumerate(seq):
            if i+NR-1<len(seq): rd(i+NR-1)
            e.wvm(("o",p)); e.wlg(("wl",i)); d=V(R0+4*nt,4)
            e(f"{MF} {d}, {V(24+4*(i%NR),4)}, {V(OF(p),4)}, {d}")
            if g.o.get("pfw",0) and i%g.o.get("pfw",0)==0: W.issue(1)
        g.stamp("wo_mm")
        g.reduce_epi(L,2*L+1,False,red=False)
        g.stamp("wo_red")
        g.publish(5*L+3,pf=g.o.get("pfx",8))
    def push_w2(g,L,n0,n1,fixed):
        it=[]
        for k in range(n0,n1):
            t=(L,"W2",k); it.append((t,66,k))
            if t in g.maps: g.w.fixed[t]=g.maps[t]
        g.w.push(it)
    def ffn1(g,L):
        e=g.e
        g.stamp("wo_pub")
        g.poll(5*L+3,236)
        g.stamp(9+12*L)
        e(f"s_mul_i32 s24, s{sW}, 14\ns_cmp_eq_u32 s{sW}, 3\ns_cselect_b32 s24, 41, s24\ns_mov_b32 s67, s24\ns_mul_i32 s25, s68, 54\ns_add_u32 s24, s24, s25\ns_mul_i32 s24, s24, 5120\ns_add_u32 s66, s24, {W_2}")
        g.w.cursor(66)
        NW2=g.NW2
        aH=(56,72); cS=(176,180); bB=(184,188)
        def ld_cb(ps):
            e(f"s_add_u32 s24, s63, {ps}\ns_min_u32 s24, s24, 53\ns_lshl_b32 s25, s24, 6\ns_lshl_b32 s24, s24, 7\ns_add_u32 s24, s24, {CS_1}\nv_lshlrev_b32 v3, 4, v240\nv_lshlrev_b32 v228, 3, v240")
            for t in range(2):
                e.vmem(f"buffer_load_dwordx4 {V(cS[t]+16*ps,4)}, v3, {WS}, s24 offen offset:{64*t}",("cb",ps))
                e.vmem(f"buffer_load_dwordx2 {V(bB[t]+16*ps,2)}, v228, {B1}, s25 offen offset:{32*t}",("cb",ps))
        def one_pass(ps,pf):
            W=g.w
            e.wvm(("cb",ps))
            for t in range(2):
                b=bB[t]+16*ps
                e(f"v_and_b32 v{b+3}, 0xffff0000, v{b+1}\nv_lshlrev_b32 v{b+2}, 16, v{b+1}\nv_and_b32 v{b+1}, 0xffff0000, v{b}\nv_lshlrev_b32 v{b}, 16, v{b}")
            g.gemm_x([(aH[t],False,(lambda p,t=t:(L,"W1",ps,2*p+t))) for t in range(2)],pf,chunks=(ps==0))
            if ps==0: g.load_stats(False)
            e(f"s_add_u32 s24, s63, {ps}\ns_lshl_b32 s24, s24, 10\ns_mul_i32 s25, s61, 55296\ns_add_u32 s24, s24, s25\ns_add_u32 s24, s24, {HB[L]}")
            for m in range(4):
                for t in range(2):
                    a=aH[t]+4*m; b=bB[t]+16*ps
                    g.norm(aH[t],m,cS[t]+16*ps,False,mul=False)
                    pr,o=g.bc(140+m)
                    for h in range(2): e(f"v_pk_fma_f32 {V(a+2*h,2)}, {V(a+2*h,2)}, {pr}, {V(b+2*h,2)} op_sel:[0,{o},0] op_sel_hi:[1,{o},1]")
                    for r in range(4): e(f"v_max_f32 v{a+r}, 0, v{a+r}")
                    for h in range(2): e(f"v_pk_mul_f32 {V(a+2*h,2)}, {V(a+2*h,2)}, {V(a+2*h,2)}")
                    T=24+4*m+2*t
                    e(f"v_cvt_pk_bf16_f32 v{T}, v{a}, v{a+1}\nv_cvt_pk_bf16_f32 v{T+1}, v{a+2}, v{a+3}")
                g.xst(f"buffer_store_dwordx4 {V(24+4*m,4)}, v1, {WS}, s24 offen")
                if m<3: e("s_add_u32 s24, s24, 55296")
        ld_cb(0); ld_cb(1)
        g.stage_x(XF[2*L+1],ST[2*L+1])
        g.stamp(10+12*L)
        def path(np_):
            def fn():
                W=g.w

                for ps in range(np_,2):
                    W.q=[t for t in W.q if t[0][:3]!=(L,"W1",ps)]
                    for k in range(40):
                        if (L,"W1",ps,k) in W.slot: W.rel((L,"W1",ps,k))
                g.push_w2(L,0,NW2,16)
                if np_==0:
                    for k in range(4): g.chunk(k)
                for ps in range(np_):
                    one_pass(ps,lambda p,ps=ps:(g.o.get("pf1a",3) if ps==0 else (g.o.get("pf1b",3) if p<g.o.get("pf1c",20) else 0))); g.stamp(f"f1_p{ps}")
                g.f1_tail(L,NW2)
            return fn
        g.fork([(f"s_cmp_lt_u32 s{sW}, 3",path(2)),(f"s_cmp_lt_u32 s{sJ}, 6",path(1)),(None,path(0))])
        g.stamp("f1_pub")
    def pt(g,soff):
        g.e.vmem(f"buffer_load_dword v216, v217, {WS}, {soff} offen"+(" sc1" if g.o.get("ptsc") else ""),"pt")
    def pt_kv(g,L):
        e=g.e
        e(f"v_lshlrev_b32 v217, 7, v0\ns_lshl_b32 s24, s60, 14\ns_lshl_b32 s25, s{sW}, 12\ns_add_u32 s24, s24, s25\ns_add_u32 s24, s24, {KBUF[L]}\ns_mov_b32 exec_hi, 0")
        g.pt("s24")
        e(f"s_mul_i32 s24, s60, 10240\ns_mul_i32 s25, s{sW}, 2560\ns_add_u32 s24, s24, s25\ns_add_u32 s24, s24, {VBUF[L]}\ns_mov_b64 exec, 0xfffff")
        g.pt("s24"); e("s_mov_b64 exec, -1")
    def pt_x(g,L):
        e=g.e
        e(f"""v_lshlrev_b32 v217, 7, v0
s_lshl_b32 s24, s{sJ}, 11
s_lshr_b32 s25, s{sJ}, 1
s_lshl_b32 s25, s25, 10
s_and_b32 s26, s{sJ}, 1
s_lshl_b32 s26, s26, 9
s_add_u32 s25, s25, s26
s_add_u32 s25, s25, {16384-2048}
v_cmp_gt_u32 vcc, 16, v0
v_mov_b32 v216, s25
v_mov_b32 v3, s24
v_cndmask_b32 v216, v216, v3, vcc
v_add_u32 v217, v217, v216
s_mov_b64 exec, 0xfffff""")
        bases=[QB]
        for b in bases:
            e(f"s_mul_i32 s24, s62, 20480\ns_add_u32 s24, s24, {b}"); g.pt("s24")
        e("s_mov_b64 exec, 1\nv_mov_b32 v217, 0")
        for b in [ST[2*L+1]]+([ST[2*L+2]] if L==0 else []):
            e(f"s_lshl_b32 s24, s60, 9\ns_lshl_b32 s25, s{sW}, 7\ns_add_u32 s24, s24, s25\ns_add_u32 s24, s24, {b}"); g.pt("s24")
        e("s_mov_b64 exec, -1")
    def pt_h(g,L):
        e=g.e; sk=e.lab("PH")
        e(f"""v_lshrrev_b32 v217, 3, v0
v_and_b32 v216, 3, v217
v_lshrrev_b32 v217, 2, v217
s_mov_b32 s24, 55296
v_mul_lo_u32 v216, v216, s24
v_lshlrev_b32 v217, 10, v217
v_add_u32 v217, v217, v216
v_and_b32 v216, 7, v0
v_lshlrev_b32 v216, 7, v216
v_add_u32 v217, v217, v216
s_lshl_b32 s24, s63, 10
s_mul_i32 s25, s61, 55296
s_add_u32 s24, s24, s25
s_add_u32 s24, s24, {HB[L]}
s_cmp_lt_u32 s{sW}, 3
s_cselect_b32 exec_hi, -1, 0
s_cmp_eq_u32 s{sW}, 3
s_cselect_b32 s25, s{sJ}, 0
s_cmp_ge_u32 s25, 6
s_cbranch_scc1 {sk}""")
        vm0=e.vm.copy(); g.pt("s24"); e.vm.merge(vm0)
        e(f"{sk}:\ns_mov_b64 exec, -1")
    def f1_tail(g,L,NW2):
        W=g.w
        g.publish(5*L+4,pf=len(W.q))
        while W.q: assert W.issue(1)==1
        for t_,sl in W.slot.items(): g.maps.setdefault(t_,sl)
    def ffn2(g,L):
        e=g.e; W=g.w; last=(L==1)
        for mm in range(4):
            e(f"s_add_u32 s24, s{sW}, {1+mm}\ns_and_b32 s24, s24, 3\ns_add_u32 s24, s24, s61\ns_mul_i32 s24, s24, 54\ns_add_u32 s24, s24, s67\ns_lshl_b32 s24, s24, 10\ns_add_u32 s{45+mm}, s24, {HB[L]}")
            W.cursor(45+mm)
        e(f"s_mul_i32 s24, s{sJ}, 160\nv_lshlrev_b32 v3, 3, v240")
        for nt in range(5): e.vmem(f"buffer_load_dwordx2 {V(84+2*nt,2)}, v3, {B2}, s24 offen offset:{32*nt}","b2")
        e.wvm("b2")
        for i in range(10):
            e(f"v_lshlrev_b32 v94, 16, v{84+i}\nv_and_b32 v95, 0xffff0000, v{84+i}\nv_pk_add_f32 {V(R0+2*i,2)}, {V(R0+2*i,2)}, v[94:95]")
        g.poll(5*L+4,236)
        g.stamp(11+12*L)
        it=[]
        for st in range(14):
            for mm in range(4): it.append(((L,"h",st,mm),45+mm,st,g.LS))
            for nt in range(5):
                k=st*5+nt
                if k>=g.NW2: it.append(((L,"W2",k),66,k))
        W.push(it)
        W.issue(g.o.get("pfh",16))
        for st in range(14):
            if st==13:
                for mm in range(4): W.use((L,"h",st,mm))
                for nt in range(5): W.use((L,"W2",st*5+nt))
                sk=e.lab("SK"); e(f"s_cmp_ge_u32 s{sW}, 2\ns_cbranch_scc1 {sk}")
            for nt in range(5):
                a=W.use((L,"W2",st*5+nt))
                for mm in range(4):
                    b=W.use((L,"h",st,mm)); d=g.accreg(mm,nt)
                    e(f"{MF} {d}, {a}, {b}, {d if (st or mm==3) else '0'}")
                    if mm==1 and st<13: W.issue(1)
                W.rel((L,"W2",st*5+nt))
                if st<13: W.issue(1)
            for mm in range(4): W.rel((L,"h",st,mm))
            if st==13: e(f"s_nop 7\n{sk}:")
        g.stamp("f2_mm")
        if not last:
            g.qkv_cursors(); g.push_kv(L+1)
        W.issue(g.o.get("pf2",16))
        g.reduce_epi(L,2,last)
        g.stamp("f2_red")
        if not last: g.publish(5*L+5,pf=g.o.get("pf3",16))
def gen_main(name,opts):
    g=G(opts); e=g.e; upto=opts.get("upto",99)
    g.prologue(name)
    g.stamp(0)
    g.qkv_cursors(); g.push_kv(0)
    n=0
    for L in range(2):
        for ph,st in ((g.qkv,5),(g.attention,7),(g.wo,None),(g.ffn1,None),(g.ffn2,12)):
            if n>=upto: break
            g.curL=L; ph(L); n+=1
            if st is not None: g.stamp(st+12*L)
    e("s_waitcnt vmcnt(0)\nM_END:\ns_endpgm")
    if opts.get("fine") is not None: print("STAMPS",g.names)
    return fix_hazards(e.L)
```

```python
from emit import *
from lay import *
PREP="prep_kernel"
def srd(e,d,p,size):
    e(f"s_mov_b32 s{d}, s{p}\ns_mov_b32 s{d+1}, s{p+1}\ns_mov_b32 s{d+2}, {size}\ns_mov_b32 s{d+3}, 0x00020000")
def gen_prep(opts={}):
    e=E()
    e(f""".globl {PREP}
.p2align 8
.type {PREP},@function
{PREP}:
s_cmp_ge_u32 s2, 504
s_cbranch_scc1 P_END
s_load_dwordx4 s[16:19], s[0:1], 0
s_load_dwordx2 s[20:21], s[0:1], 16
s_load_dwordx2 s[22:23], s[0:1], 32
s_load_dwordx2 s[24:25], s[0:1], 48
s_load_dwordx2 s[26:27], s[0:1], 80
s_and_b32 s3, s2, 7
s_mul_i32 s3, s3, 63
s_lshr_b32 s12, s2, 3
s_add_u32 s3, s3, s12
v_lshrrev_b32 v1, 6, v0
v_and_b32 v0, 63, v0
s_nop 0
v_readfirstlane_b32 s12, v1
v_lshlrev_b32 v2, 4, v0
v_lshlrev_b32 v3, 3, v0
v_lshrrev_b32 v4, 2, v0
v_and_b32 v5, 3, v0
s_mul_i32 s13, s12, 5120
v_add_u32 v3, s13, v3
s_mul_i32 s14, s12, 5
s_waitcnt lgkmcnt(0)""")
    srd(e,8,26,WS_USED)
    if opts.get("pcp",0):
        MAINL="interleave_layers__sliding_block__dense_activation_squared_relu__prompt_kernel"
        e(f"""s_getpc_b64 s[40:41]
PPC:
s_lshr_b32 s42, s2, 3
s_lshl_b32 s42, s42, 2
s_add_u32 s42, s42, s12
s_lshl_b32 s42, s42, 10
s_min_u32 s42, s42, M_END-{MAINL}-1024
s_add_u32 s42, s42, {MAINL}-PPC
s_add_u32 s40, s40, s42
s_addc_u32 s41, s41, 0
v_mov_b32 v65, s41
v_add_co_u32 v64, vcc, s40, v2
v_addc_co_u32 v65, vcc, 0, v65, vcc""")
        e.vmem("global_load_dwordx4 v[68:71], v[64:65], off")
    pw=opts.get("pw",0)
    rng=[]
    if pw&4: rng.append((KBUF[0],HB[0]-KBUF[0]))
    if pw&2: rng.append((HB[0],WS_USED-HB[0]))
    for (b0,sz) in rng:
        nb=(sz//1024+2015)//2016
        e(f"s_lshl_b32 s28, s2, 2\ns_add_u32 s28, s28, s12\ns_mul_i32 s28, s28, {nb*1024}\ns_add_u32 s29, s28, {b0}")
        for k in range(nb):
            if k and k%4==0: e("s_add_u32 s29, s29, 4096\ns_add_u32 s28, s28, 4096")
            lab=f"P_W{b0}_{k}"
            e(f"s_cmp_lt_u32 s28, {sz-(k%4)*1024}\ns_cbranch_scc0 {lab}")
            e.vmem(f"buffer_store_dwordx4 v[0:3], v2, s[8:11], s29 offen offset:{(k%4)*1024}")
            e(f"{lab}:")
    tl=opts.get("tlb",0)
    if tl:
        nch=(WS_USED+(64<<tl)-1)//(64<<tl)
        e(f"""s_lshr_b32 s28, s2, 3
s_lshl_b32 s28, s28, 2
s_add_u32 s28, s28, s12
s_cmp_lt_u32 s28, {nch}
s_cbranch_scc0 P_NT
s_lshl_b32 s28, s28, 6
v_add_u32 v60, s28, v0
v_lshlrev_b32 v60, {tl}, v60""")
        e.vmem(f"buffer_load_dword v61, v60, s[8:11], 0 offen")
        e("P_NT:")
    e("""s_cmp_lt_u32 s3, 120
s_cbranch_scc1 P_QKV
s_cmp_lt_u32 s3, 228
s_cbranch_scc1 P_W1
s_cmp_lt_u32 s3, 268
s_cbranch_scc1 P_WO
s_cmp_lt_u32 s3, 376
s_cbranch_scc1 P_W2
s_branch P_X""")
    def xrows(i):
        e(f"""s_add_u32 s30, s14, {i}
s_lshr_b32 s31, s30, 1
s_mul_i32 s31, s31, 80
s_and_b32 s32, s30, 1
s_lshl_b32 s32, s32, 5
s_add_u32 s31, s31, s32
s_sub_u32 s32, s30, 16
s_mul_i32 s32, s32, 160
s_add_u32 s32, s32, 64
s_cmp_lt_u32 s30, 16
s_cselect_b32 s31, s31, s32
s_cselect_b32 s32, 16, 80
s_add_u32 s32, s32, s31""")
    def loads(i,rowb,vo):
        e(f"""s_mul_i32 s31, s31, {rowb}
s_mul_i32 s32, s32, {rowb}
s_add_u32 s31, s31, s15
s_add_u32 s32, s32, s15""")
        e.vmem(f"buffer_load_dwordx2 v[{16+4*i}:{17+4*i}], {vo}, s[4:7], s31 offen")
        e.vmem(f"buffer_load_dwordx2 v[{18+4*i}:{19+4*i}], {vo}, s[4:7], s32 offen")
    def tail(cs,nm):
        e.wvm0()
        for i in range(10): e(f"ds_write_b64 v3, v[{16+2*i}:{17+2*i}] offset:{512*i}")
        e("s_waitcnt lgkmcnt(0)")
        for i in range(10): e(f"ds_read_b64_tr_b16 v[{16+2*i}:{17+2*i}], v3 offset:{512*i}")
        e("s_waitcnt lgkmcnt(0)")
        for i in range(5): e(f"buffer_store_dwordx4 v[{16+4*i}:{19+4*i}], v2, s[8:11], s{40+i} offen")
        if cs:
            e("v_mov_b32 v8, 0x3f803f80\nv_mov_b32 v9, 0x3f803f80\nv_mov_b32 v10, 0x3f803f80\nv_mov_b32 v11, 0x3f803f80")
            e("v_mov_b32 v12, 0\nv_mov_b32 v13, 0\nv_mov_b32 v14, 0\nv_mov_b32 v15, 0")
            for i in range(5): e(f"v_mfma_f32_16x16x32_bf16 v[12:15], v[{16+4*i}:{19+4*i}], v[8:11], v[12:15]")
            e(f"""s_lshl_b32 s13, s12, 10
v_add_u32 v6, s13, v2
s_barrier
ds_write_b128 v6, v[12:15] offset:20480
s_waitcnt lgkmcnt(0)
s_barrier
s_cmp_lg_u32 s12, 0
s_cbranch_scc1 P_FIN
ds_read_b128 v[16:19], v2 offset:{20480+1024}
ds_read_b128 v[20:23], v2 offset:{20480+2048}
ds_read_b128 v[24:27], v2 offset:{20480+3072}
s_waitcnt lgkmcnt(0)""")
            for r in range(4): e(f"v_add_f32 v{12+r}, v{12+r}, v{16+r}\nv_add_f32 v{20+r}, v{20+r}, v{24+r}")
            for r in range(4): e(f"v_add_f32 v{12+r}, v{12+r}, v{20+r}")
            e(f"""v_lshrrev_b32 v6, 4, v0
v_lshlrev_b32 v6, 4, v6
v_and_b32 v7, 15, v0
v_cmp_eq_u32 vcc, 0, v7
s_and_saveexec_b64 s[34:35], vcc
buffer_store_dwordx4 v[12:15], v6, s[8:11], s50 offen""")
        e("s_branch P_FIN")
    e("P_QKV:")
    srd(e,4,18,640*1920*2)
    e(f"""s_mul_i32 s33, s3, 4370
s_lshr_b32 s33, s33, 16
s_mul_i32 s34, s33, 15
s_sub_u32 s34, s3, s34
s_lshr_b32 s35, s34, 2
s_sub_u32 s36, s34, 12
s_cmp_lt_u32 s34, 12
s_cselect_b32 s35, s35, s36
s_add_u32 s35, s35, 1
s_cmp_eq_u32 s35, 3
s_cselect_b32 s35, 0, s35
s_mul_i32 s35, s35, 640
s_mul_i32 s36, s33, 80
s_add_u32 s35, s35, s36
s_and_b32 s36, s34, 3
s_mul_i32 s36, s36, 20
s_cmp_lt_u32 s34, 12
s_cselect_b32 s36, s36, 16
s_cselect_b32 s37, 8, 40
s_add_u32 s15, s35, s36
s_lshl_b32 s15, s15, 1
v_mul_lo_u32 v6, v5, s37
s_mov_b32 s37, 3840
v_mul_lo_u32 v7, v4, s37
v_add_u32 v6, v6, v7
s_lshl_b32 s50, s3, 6
s_add_u32 s50, s50, {CS_QKV}""")
    for i in range(5):
        xrows(i)
        e(f"s_mul_i32 s{40+i}, s3, 20\ns_add_u32 s{40+i}, s{40+i}, s30\ns_lshl_b32 s{40+i}, s{40+i}, 10\ns_add_u32 s{40+i}, s{40+i}, {W_QKV}")
        loads(i,3840,"v6")
    tail(True,"q")
    e("P_W1:")
    srd(e,4,22,640*1728*2)
    e(f"""s_sub_u32 s33, s3, 120
s_lshl_b32 s15, s33, 5
v_lshlrev_b32 v6, 3, v5
s_mov_b32 s37, 3456
v_mul_lo_u32 v7, v4, s37
v_add_u32 v6, v6, v7
s_lshl_b32 s50, s33, 6
s_add_u32 s50, s50, {CS_1}
s_lshr_b32 s34, s33, 1
s_mul_i32 s34, s34, 40
s_and_b32 s35, s33, 1
s_add_u32 s34, s34, s35""")
    for i in range(5):
        xrows(i)
        e(f"s_lshl_b32 s{40+i}, s30, 1\ns_add_u32 s{40+i}, s{40+i}, s34\ns_lshl_b32 s{40+i}, s{40+i}, 10\ns_add_u32 s{40+i}, s{40+i}, {W_1}")
        loads(i,3456,"v6")
    tail(True,"1")
    e("P_WO:")
    srd(e,4,20,640*640*2)
    e(f"""s_sub_u32 s33, s3, 228
s_lshl_b32 s15, s33, 5
s_mul_i32 s34, s33, 13108
s_lshr_b32 s34, s34, 16
s_mul_i32 s35, s34, 5
s_sub_u32 s35, s33, s35
s_mul_i32 s34, s34, 100
s_add_u32 s34, s34, s35
v_lshlrev_b32 v6, 3, v5
s_mov_b32 s37, 1280
v_mul_lo_u32 v7, v4, s37
v_add_u32 v7, v6, v7
v_lshrrev_b32 v8, 2, v4
v_mul_u32_u24 v8, 20, v8
v_and_b32 v9, 3, v4
v_add_u32 v8, v8, v9
v_mul_lo_u32 v8, v8, s37
v_add_u32 v8, v6, v8""")
    for i in range(5):
        e(f"""s_add_u32 s30, s14, {i}
s_lshr_b32 s31, s30, 1
s_mul_i32 s31, s31, 80
s_and_b32 s32, s30, 1
s_mul_i32 s32, s32, 40
s_add_u32 s31, s31, s32
s_sub_u32 s36, s30, 16
s_mul_i32 s32, s36, 160
s_add_u32 s32, s32, 16
s_lshr_b32 s38, s30, 2
s_and_b32 s39, s30, 3
s_cmp_lt_u32 s30, 16
s_cselect_b32 s31, s31, s32
s_cselect_b32 s32, 20, 80
s_cselect_b32 s38, s38, s36
s_cselect_b32 s39, s39, 4
s_cselect_b64 s[52:53], -1, 0
s_add_u32 s32, s32, s31
s_mul_i32 s38, s38, 5
s_add_u32 s38, s38, s39
s_mul_i32 s38, s38, 5
s_add_u32 s38, s38, s34
s_lshl_b32 s38, s38, 10
s_add_u32 s{40+i}, s38, {W_O}
v_cndmask_b32 v{40+i}, v8, v7, s[52:53]""")
        loads(i,1280,f"v{40+i}")
    tail(False,"o")
    e("P_W2:")
    srd(e,4,24,1728*640*2)
    e(f"""s_sub_u32 s33, s3, 268
s_mul_i32 s33, s33, 20
s_add_u32 s33, s33, s14
v_lshlrev_b32 v6, 3, v5
s_mov_b32 s37, 1280
v_mul_lo_u32 v7, v4, s37
v_add_u32 v6, v6, v7""")
    for i in range(5):
        e(f"""s_add_u32 s30, s33, {i}
s_mul_i32 s34, s30, 1214
s_lshr_b32 s34, s34, 16
s_mul_i32 s35, s34, 54
s_sub_u32 s35, s30, s35
s_lshl_b32 s15, s34, 5
s_mul_i32 s36, s34, 13108
s_lshr_b32 s36, s36, 16
s_mul_i32 s38, s36, 5
s_sub_u32 s38, s34, s38
s_mul_i32 s36, s36, 54
s_add_u32 s36, s36, s35
s_mul_i32 s36, s36, 5
s_add_u32 s36, s36, s38
s_lshl_b32 s36, s36, 10
s_add_u32 s{40+i}, s36, {W_2}
s_lshl_b32 s31, s35, 5
s_add_u32 s32, s31, 16""")
        loads(i,1280,"v6")
    tail(False,"2")
    e("P_X:")
    srd(e,4,16,2048*1280)
    e(f"""s_sub_u32 s33, s3, 376
v_and_b32 v7, 15, v0
v_mul_u32_u24 v6, 1280, v7
v_lshrrev_b32 v8, 4, v0
v_lshlrev_b32 v8, 3, v8
v_add_u32 v6, v6, v8
s_mul_i32 s34, s33, {16*1280}""".replace("v_mul_u32_u24 v6, 1280, v7","v_mul_u32_u24 v6, 0x500, v7"))
    for i in range(5):
        xrows(i)
        e(f"""s_lshl_b32 s31, s31, 1
s_lshl_b32 s32, s32, 1
s_add_u32 s31, s31, s34
s_add_u32 s32, s32, s34
s_mul_i32 s{40+i}, s33, 20
s_add_u32 s{40+i}, s{40+i}, s30
s_lshl_b32 s{40+i}, s{40+i}, 10
s_add_u32 s{40+i}, s{40+i}, {XF[0]}
s_cmp_lt_u32 s30, 16
s_cselect_b32 s{45+i}, 8, 512""")
        e.vmem(f"buffer_load_dwordx2 v[{16+4*i}:{17+4*i}], v6, s[4:7], s31 offen")
        e.vmem(f"buffer_load_dwordx2 v[{18+4*i}:{19+4*i}], v6, s[4:7], s32 offen")
    e.wvm0()
    e("v_lshlrev_b32 v9, 3, v0")
    for i in range(5):
        e(f"""s_cmp_eq_u32 s{45+i}, 8
s_cselect_b64 s[52:53], -1, 0
v_cndmask_b32 v10, v9, v2, s[52:53]
v_add_u32 v11, s{45+i}, v10
buffer_store_dwordx2 v[{16+4*i}:{17+4*i}], v10, s[8:11], s{40+i} offen
buffer_store_dwordx2 v[{18+4*i}:{19+4*i}], v11, s[8:11], s{40+i} offen""")
    if opts.get("pw",0)&1:
        for i in range(5): e(f"s_add_u32 s{40+i}, s{40+i}, {QB-PB}\nbuffer_store_dwordx4 v[{16+4*i}:{19+4*i}], v2, s[8:11], s{40+i} offen")
    e("v_mov_b32 v12, 0\nv_mov_b32 v13, 0\nv_mov_b32 v14, 0\nv_mov_b32 v15, 0\nv_mov_b32 v8, 0x3f803f80")
    for k in range(20): e(f"v_dot2_f32_bf16 v12, v{16+k}, v8, v12\ns_nop 2\nv_dot2_f32_bf16 v13, v{16+k}, v{16+k}, v13\ns_nop 2")
    for sw in ("v_permlane32_swap_b32","v_permlane16_swap_b32"):
        e(f"""v_mov_b32 v36, v12
v_mov_b32 v37, v13
s_nop 1
{sw} v12, v36
{sw} v13, v37
s_nop 1
v_add_f32 v12, v12, v36
v_add_f32 v13, v13, v37""")
    e(f"""s_lshr_b32 s34, s33, 2
s_lshl_b32 s34, s34, 3
s_lshl_b32 s35, s12, 1
s_add_u32 s34, s34, s35
s_lshl_b32 s34, s34, 9
s_and_b32 s35, s33, 3
s_lshl_b32 s35, s35, 7
s_add_u32 s34, s34, s35
s_add_u32 s34, s34, {ST[0]}
v_mov_b32 v14, 0
v_mov_b32 v15, 0
v_cmp_gt_u32 vcc, 16, v0
s_and_saveexec_b64 s[36:37], vcc
buffer_store_dwordx2 v[12:13], v9, s[8:11], s34 offen
buffer_store_dwordx2 v[14:15], v9, s[8:11], s34 offen offset:512
s_mov_b64 exec, s[36:37]
s_cmp_lt_u32 s33, 40
s_cbranch_scc0 P_FIN
s_cmp_eq_u32 s12, 0
s_cbranch_scc0 P_FIN
s_lshl_b32 s34, s33, 7
s_add_u32 s34, s34, {FLAGS}
v_lshlrev_b32 v9, 2, v0
v_cmp_gt_u32 vcc, 32, v0
s_and_saveexec_b64 s[36:37], vcc
buffer_store_dword v14, v9, s[8:11], s34 offen
P_FIN:
s_waitcnt vmcnt(0)
P_END:
s_endpgm""")
    return fix_hazards(e.L)
def desc(name,vg,acc,sg=102):
    return f""".amdhsa_kernel {name}
  .amdhsa_next_free_vgpr {vg}
  .amdhsa_next_free_sgpr {sg}
  .amdhsa_accum_offset {acc}
  .amdhsa_group_segment_fixed_size 0
  .amdhsa_kernarg_size 88
  .amdhsa_user_sgpr_count 2
  .amdhsa_user_sgpr_kernarg_segment_ptr 1
  .amdhsa_system_sgpr_workgroup_id_x 1
.end_amdhsa_kernel
"""
```

```python
from emit import *
from lay import *
PREP="prep_kernel"
def srd(e,d,p,size):
    e(f"s_mov_b32 s{d}, s{p}\ns_mov_b32 s{d+1}, s{p+1}\ns_mov_b32 s{d+2}, {size}\ns_mov_b32 s{d+3}, 0x00020000")
def gen_prep(opts={}):
    e=E()
    e(f""".globl {PREP}
.p2align 8
.type {PREP},@function
{PREP}:
s_cmp_ge_u32 s2, 504
s_cbranch_scc1 P_END
s_load_dwordx4 s[16:19], s[0:1], 0
s_load_dwordx2 s[20:21], s[0:1], 16
s_load_dwordx2 s[22:23], s[0:1], 32
s_load_dwordx2 s[24:25], s[0:1], 48
s_load_dwordx2 s[26:27], s[0:1], 80
s_and_b32 s3, s2, 7
s_mul_i32 s3, s3, 63
s_lshr_b32 s12, s2, 3
s_add_u32 s3, s3, s12
v_lshrrev_b32 v1, 6, v0
v_and_b32 v0, 63, v0
s_nop 0
v_readfirstlane_b32 s12, v1
v_lshlrev_b32 v2, 4, v0
v_lshlrev_b32 v3, 3, v0
v_lshrrev_b32 v4, 2, v0
v_and_b32 v5, 3, v0
s_mul_i32 s13, s12, 5120
v_add_u32 v3, s13, v3
s_mul_i32 s14, s12, 5""")
    if opts.get("ppf",0):
        e(f"""s_getpc_b64 s[40:41]
PPO:
s_lshr_b32 s42, s2, 3
s_lshl_b32 s42, s42, 2
s_add_u32 s42, s42, s12
s_lshl_b32 s42, s42, 10
s_min_u32 s42, s42, P_END-PPO-1024
s_add_u32 s40, s40, s42
s_addc_u32 s41, s41, 0
v_mov_b32 v67, s41
v_add_co_u32 v66, vcc, s40, v2
v_addc_co_u32 v67, vcc, 0, v67, vcc""")
        e.vmem("global_load_dwordx4 v[72:75], v[66:67], off")
    e("s_waitcnt lgkmcnt(0)")
    srd(e,8,26,WS_USED)
    if opts.get("pcp",1):
        MAINL="interleave_layers__sliding_block__dense_activation_squared_relu__prompt_kernel"
        e(f"""s_getpc_b64 s[40:41]
PPC:
s_lshr_b32 s42, s2, 3
s_lshl_b32 s42, s42, 2
s_add_u32 s42, s42, s12
s_lshl_b32 s42, s42, 10
s_min_u32 s42, s42, M_END-{MAINL}-1024
s_add_u32 s42, s42, {MAINL}-PPC
s_add_u32 s40, s40, s42
s_addc_u32 s41, s41, 0
v_mov_b32 v65, s41
v_add_co_u32 v64, vcc, s40, v2
v_addc_co_u32 v65, vcc, 0, v65, vcc""")
        e.vmem("global_load_dwordx4 v[68:71], v[64:65], off")
    pw=opts.get("pw",0)
    rng=[]
    if pw&4: rng.append((KBUF[0],HB[0]-KBUF[0]))
    if pw&2: rng.append((HB[0],WS_USED-HB[0]))
    for (b0,sz) in rng:
        nb=(sz//1024+2015)//2016
        e(f"s_lshl_b32 s28, s2, 2\ns_add_u32 s28, s28, s12\ns_mul_i32 s28, s28, {nb*1024}\ns_add_u32 s29, s28, {b0}")
        for k in range(nb):
            if k and k%4==0: e("s_add_u32 s29, s29, 4096\ns_add_u32 s28, s28, 4096")
            lab=f"P_W{b0}_{k}"
            e(f"s_cmp_lt_u32 s28, {sz-(k%4)*1024}\ns_cbranch_scc0 {lab}")
            e.vmem(f"buffer_store_dwordx4 v[0:3], v2, s[8:11], s29 offen offset:{(k%4)*1024}")
            e(f"{lab}:")
    tl=opts.get("tlb",0)
    if tl:
        nch=(WS_USED+(64<<tl)-1)//(64<<tl)
        e(f"""s_lshr_b32 s28, s2, 3
s_lshl_b32 s28, s28, 2
s_add_u32 s28, s28, s12
s_cmp_lt_u32 s28, {nch}
s_cbranch_scc0 P_NT
s_lshl_b32 s28, s28, 6
v_add_u32 v60, s28, v0
v_lshlrev_b32 v60, {tl}, v60""")
        e.vmem(f"buffer_load_dword v61, v60, s[8:11], 0 offen")
        e("P_NT:")
    e("""s_cmp_lt_u32 s3, 120
s_cbranch_scc1 P_QKV
s_cmp_lt_u32 s3, 228
s_cbranch_scc1 P_W1
s_cmp_lt_u32 s3, 268
s_cbranch_scc1 P_WO
s_cmp_lt_u32 s3, 376
s_cbranch_scc1 P_W2
s_branch P_X""")
    def xrows(i):
        e(f"""s_add_u32 s30, s14, {i}
s_lshr_b32 s31, s30, 1
s_mul_i32 s31, s31, 80
s_and_b32 s32, s30, 1
s_lshl_b32 s32, s32, 5
s_add_u32 s31, s31, s32
s_sub_u32 s32, s30, 16
s_mul_i32 s32, s32, 160
s_add_u32 s32, s32, 64
s_cmp_lt_u32 s30, 16
s_cselect_b32 s31, s31, s32
s_cselect_b32 s32, 16, 80
s_add_u32 s32, s32, s31""")
    def loads(i,rowb,vo):
        e(f"""s_mul_i32 s31, s31, {rowb}
s_mul_i32 s32, s32, {rowb}
s_add_u32 s31, s31, s15
s_add_u32 s32, s32, s15""")
        e.vmem(f"buffer_load_dwordx2 v[{16+4*i}:{17+4*i}], {vo}, s[4:7], s31 offen")
        e.vmem(f"buffer_load_dwordx2 v[{18+4*i}:{19+4*i}], {vo}, s[4:7], s32 offen")
    def tail(cs,nm):
        e.wvm0()
        for i in range(10): e(f"ds_write_b64 v3, v[{16+2*i}:{17+2*i}] offset:{512*i}")
        e("s_waitcnt lgkmcnt(0)")
        for i in range(10): e(f"ds_read_b64_tr_b16 v[{16+2*i}:{17+2*i}], v3 offset:{512*i}")
        e("s_waitcnt lgkmcnt(0)")
        for i in range(5): e(f"buffer_store_dwordx4 v[{16+4*i}:{19+4*i}], v2, s[8:11], s{40+i} offen")
        if cs:
            e("v_mov_b32 v8, 0x3f803f80\nv_mov_b32 v9, 0x3f803f80\nv_mov_b32 v10, 0x3f803f80\nv_mov_b32 v11, 0x3f803f80")
            e("v_mov_b32 v12, 0\nv_mov_b32 v13, 0\nv_mov_b32 v14, 0\nv_mov_b32 v15, 0")
            for i in range(5): e(f"v_mfma_f32_16x16x32_bf16 v[12:15], v[{16+4*i}:{19+4*i}], v[8:11], v[12:15]")
            e(f"""s_lshl_b32 s13, s12, 10
v_add_u32 v6, s13, v2
s_barrier
ds_write_b128 v6, v[12:15] offset:20480
s_waitcnt lgkmcnt(0)
s_barrier
s_cmp_lg_u32 s12, 0
s_cbranch_scc1 P_FIN
ds_read_b128 v[16:19], v2 offset:{20480+1024}
ds_read_b128 v[20:23], v2 offset:{20480+2048}
ds_read_b128 v[24:27], v2 offset:{20480+3072}
s_waitcnt lgkmcnt(0)""")
            for r in range(4): e(f"v_add_f32 v{12+r}, v{12+r}, v{16+r}\nv_add_f32 v{20+r}, v{20+r}, v{24+r}")
            for r in range(4): e(f"v_add_f32 v{12+r}, v{12+r}, v{20+r}")
            e(f"""v_lshrrev_b32 v6, 4, v0
v_lshlrev_b32 v6, 4, v6
v_and_b32 v7, 15, v0
v_cmp_eq_u32 vcc, 0, v7
s_and_saveexec_b64 s[34:35], vcc
buffer_store_dwordx4 v[12:15], v6, s[8:11], s50 offen""")
        e("s_branch P_FIN")
    e("P_QKV:")
    srd(e,4,18,640*1920*2)
    e(f"""s_mul_i32 s33, s3, 4370
s_lshr_b32 s33, s33, 16
s_mul_i32 s34, s33, 15
s_sub_u32 s34, s3, s34
s_lshr_b32 s35, s34, 2
s_sub_u32 s36, s34, 12
s_cmp_lt_u32 s34, 12
s_cselect_b32 s35, s35, s36
s_add_u32 s35, s35, 1
s_cmp_eq_u32 s35, 3
s_cselect_b32 s35, 0, s35
s_mul_i32 s35, s35, 640
s_mul_i32 s36, s33, 80
s_add_u32 s35, s35, s36
s_and_b32 s36, s34, 3
s_mul_i32 s36, s36, 20
s_cmp_lt_u32 s34, 12
s_cselect_b32 s36, s36, 16
s_cselect_b32 s37, 8, 40
s_add_u32 s15, s35, s36
s_lshl_b32 s15, s15, 1
v_mul_lo_u32 v6, v5, s37
s_mov_b32 s37, 3840
v_mul_lo_u32 v7, v4, s37
v_add_u32 v6, v6, v7
s_lshl_b32 s50, s3, 6
s_add_u32 s50, s50, {CS_QKV}""")
    for i in range(5):
        xrows(i)
        e(f"s_mul_i32 s{40+i}, s3, 20\ns_add_u32 s{40+i}, s{40+i}, s30\ns_lshl_b32 s{40+i}, s{40+i}, 10\ns_add_u32 s{40+i}, s{40+i}, {W_QKV}")
        loads(i,3840,"v6")
    tail(True,"q")
    e("P_W1:")
    srd(e,4,22,640*1728*2)
    e(f"""s_sub_u32 s33, s3, 120
s_lshl_b32 s15, s33, 5
v_lshlrev_b32 v6, 3, v5
s_mov_b32 s37, 3456
v_mul_lo_u32 v7, v4, s37
v_add_u32 v6, v6, v7
s_lshl_b32 s50, s33, 6
s_add_u32 s50, s50, {CS_1}
s_lshr_b32 s34, s33, 1
s_mul_i32 s34, s34, 40
s_and_b32 s35, s33, 1
s_add_u32 s34, s34, s35""")
    for i in range(5):
        xrows(i)
        e(f"s_lshl_b32 s{40+i}, s30, 1\ns_add_u32 s{40+i}, s{40+i}, s34\ns_lshl_b32 s{40+i}, s{40+i}, 10\ns_add_u32 s{40+i}, s{40+i}, {W_1}")
        loads(i,3456,"v6")
    tail(True,"1")
    e("P_WO:")
    srd(e,4,20,640*640*2)
    e(f"""s_sub_u32 s33, s3, 228
s_lshl_b32 s15, s33, 5
s_mul_i32 s34, s33, 13108
s_lshr_b32 s34, s34, 16
s_mul_i32 s35, s34, 5
s_sub_u32 s35, s33, s35
s_mul_i32 s34, s34, 100
s_add_u32 s34, s34, s35
v_lshlrev_b32 v6, 3, v5
s_mov_b32 s37, 1280
v_mul_lo_u32 v7, v4, s37
v_add_u32 v7, v6, v7
v_lshrrev_b32 v8, 2, v4
v_mul_u32_u24 v8, 20, v8
v_and_b32 v9, 3, v4
v_add_u32 v8, v8, v9
v_mul_lo_u32 v8, v8, s37
v_add_u32 v8, v6, v8""")
    for i in range(5):
        e(f"""s_add_u32 s30, s14, {i}
s_lshr_b32 s31, s30, 1
s_mul_i32 s31, s31, 80
s_and_b32 s32, s30, 1
s_mul_i32 s32, s32, 40
s_add_u32 s31, s31, s32
s_sub_u32 s36, s30, 16
s_mul_i32 s32, s36, 160
s_add_u32 s32, s32, 16
s_lshr_b32 s38, s30, 2
s_and_b32 s39, s30, 3
s_cmp_lt_u32 s30, 16
s_cselect_b32 s31, s31, s32
s_cselect_b32 s32, 20, 80
s_cselect_b32 s38, s38, s36
s_cselect_b32 s39, s39, 4
s_cselect_b64 s[52:53], -1, 0
s_add_u32 s32, s32, s31
s_mul_i32 s38, s38, 5
s_add_u32 s38, s38, s39
s_mul_i32 s38, s38, 5
s_add_u32 s38, s38, s34
s_lshl_b32 s38, s38, 10
s_add_u32 s{40+i}, s38, {W_O}
v_cndmask_b32 v{40+i}, v8, v7, s[52:53]""")
        loads(i,1280,f"v{40+i}")
    tail(False,"o")
    e("P_W2:")
    srd(e,4,24,1728*640*2)
    e(f"""s_sub_u32 s33, s3, 268
s_mul_i32 s33, s33, 20
s_add_u32 s33, s33, s14
v_lshlrev_b32 v6, 3, v5
s_mov_b32 s37, 1280
v_mul_lo_u32 v7, v4, s37
v_add_u32 v6, v6, v7""")
    for i in range(5):
        e(f"""s_add_u32 s30, s33, {i}
s_mul_i32 s34, s30, 1214
s_lshr_b32 s34, s34, 16
s_mul_i32 s35, s34, 54
s_sub_u32 s35, s30, s35
s_lshl_b32 s15, s34, 5
s_mul_i32 s36, s34, 13108
s_lshr_b32 s36, s36, 16
s_mul_i32 s38, s36, 5
s_sub_u32 s38, s34, s38
s_mul_i32 s36, s36, 54
s_add_u32 s36, s36, s35
s_mul_i32 s36, s36, 5
s_add_u32 s36, s36, s38
s_lshl_b32 s36, s36, 10
s_add_u32 s{40+i}, s36, {W_2}
s_lshl_b32 s31, s35, 5
s_add_u32 s32, s31, 16""")
        loads(i,1280,"v6")
    tail(False,"2")
    e("P_X:")
    srd(e,4,16,2048*1280)
    e(f"""s_sub_u32 s33, s3, 376
v_and_b32 v7, 15, v0
v_mul_u32_u24 v6, 1280, v7
v_lshrrev_b32 v8, 4, v0
v_lshlrev_b32 v8, 3, v8
v_add_u32 v6, v6, v8
s_mul_i32 s34, s33, {16*1280}""".replace("v_mul_u32_u24 v6, 1280, v7","v_mul_u32_u24 v6, 0x500, v7"))
    for i in range(5):
        xrows(i)
        e(f"""s_lshl_b32 s31, s31, 1
s_lshl_b32 s32, s32, 1
s_add_u32 s31, s31, s34
s_add_u32 s32, s32, s34
s_mul_i32 s{40+i}, s33, 20
s_add_u32 s{40+i}, s{40+i}, s30
s_lshl_b32 s{40+i}, s{40+i}, 10
s_add_u32 s{40+i}, s{40+i}, {XF[0]}
s_cmp_lt_u32 s30, 16
s_cselect_b32 s{45+i}, 8, 512""")
        e.vmem(f"buffer_load_dwordx2 v[{16+4*i}:{17+4*i}], v6, s[4:7], s31 offen")
        e.vmem(f"buffer_load_dwordx2 v[{18+4*i}:{19+4*i}], v6, s[4:7], s32 offen")
    e.wvm0()
    e("v_lshlrev_b32 v9, 3, v0")
    for i in range(5):
        e(f"""s_cmp_eq_u32 s{45+i}, 8
s_cselect_b64 s[52:53], -1, 0
v_cndmask_b32 v10, v9, v2, s[52:53]
v_add_u32 v11, s{45+i}, v10
buffer_store_dwordx2 v[{16+4*i}:{17+4*i}], v10, s[8:11], s{40+i} offen
buffer_store_dwordx2 v[{18+4*i}:{19+4*i}], v11, s[8:11], s{40+i} offen""")
    if opts.get("pw",0)&1:
        for i in range(5): e(f"s_add_u32 s{40+i}, s{40+i}, {QB-PB}\nbuffer_store_dwordx4 v[{16+4*i}:{19+4*i}], v2, s[8:11], s{40+i} offen")
    e("v_mov_b32 v12, 0\nv_mov_b32 v13, 0\nv_mov_b32 v14, 0\nv_mov_b32 v15, 0\nv_mov_b32 v8, 0x3f803f80")
    for k in range(20): e(f"v_dot2_f32_bf16 v12, v{16+k}, v8, v12\ns_nop 2\nv_dot2_f32_bf16 v13, v{16+k}, v{16+k}, v13\ns_nop 2")
    for sw in ("v_permlane32_swap_b32","v_permlane16_swap_b32"):
        e(f"""v_mov_b32 v36, v12
v_mov_b32 v37, v13
s_nop 1
{sw} v12, v36
{sw} v13, v37
s_nop 1
v_add_f32 v12, v12, v36
v_add_f32 v13, v13, v37""")
    e(f"""s_lshr_b32 s34, s33, 2
s_lshl_b32 s34, s34, 3
s_lshl_b32 s35, s12, 1
s_add_u32 s34, s34, s35
s_lshl_b32 s34, s34, 9
s_and_b32 s35, s33, 3
s_lshl_b32 s35, s35, 7
s_add_u32 s34, s34, s35
s_add_u32 s34, s34, {ST[0]}
v_mov_b32 v14, 0
v_mov_b32 v15, 0
v_cmp_gt_u32 vcc, 16, v0
s_and_saveexec_b64 s[36:37], vcc
buffer_store_dwordx2 v[12:13], v9, s[8:11], s34 offen
buffer_store_dwordx2 v[14:15], v9, s[8:11], s34 offen offset:512
s_mov_b64 exec, s[36:37]
s_cmp_lt_u32 s33, 40
s_cbranch_scc0 P_FIN
s_cmp_eq_u32 s12, 0
s_cbranch_scc0 P_FIN
s_lshl_b32 s34, s33, 7
s_add_u32 s34, s34, {FLAGS}
v_lshlrev_b32 v9, 2, v0
v_cmp_gt_u32 vcc, 32, v0
s_and_saveexec_b64 s[36:37], vcc
buffer_store_dword v14, v9, s[8:11], s34 offen
P_FIN:
s_waitcnt vmcnt(0)
P_END:
s_endpgm""")
    return fix_hazards(e.L)
def desc(name,vg,acc,sg=102):
    return f""".amdhsa_kernel {name}
  .amdhsa_next_free_vgpr {vg}
  .amdhsa_next_free_sgpr {sg}
  .amdhsa_accum_offset {acc}
  .amdhsa_group_segment_fixed_size 0
  .amdhsa_kernarg_size 88
  .amdhsa_user_sgpr_count 2
  .amdhsa_user_sgpr_kernarg_segment_ptr 1
  .amdhsa_system_sgpr_workgroup_id_x 1
.end_amdhsa_kernel
"""
```
